```python
import torch

def _softmax(x, axis=-1):
    return torch.softmax(x, dim=axis)
def _gelu(x):
    return torch.nn.functional.gelu(x, approximate="tanh")
def _silu(x):
    return torch.nn.functional.silu(x)
def _sigmoid(x):
    return torch.sigmoid(x)
def _layernorm(x, axis=-1, eps=1e-5):
    m = x.mean(dim=axis, keepdim=True)
    v = x.var(dim=axis, keepdim=True, unbiased=False)
    return (x - m) / torch.sqrt(v + eps)
def _scatter_add(tgt, idx, src, axis=0):
    return tgt.clone().index_add_(axis, idx, src)
def _segment_sum(src, seg, n):
    out = torch.zeros((n,) + src.shape[1:], dtype=src.dtype)
    return out.index_add_(0, seg, src)
def _pad(x, pw):
    flat = tuple(v for pair in reversed(pw) for v in pair)
    return torch.nn.functional.pad(x, flat)

kernel_name = 'interleave_layers__mha_block__glu_gated_glu__prompt'

def setup_inputs():

    _w = (lambda a: (lambda t: t.to(torch.bfloat16) if t.is_floating_point() else t)(torch.as_tensor(a)))
    def _A_setup():
        B, S, D, H = 1, 2048, 448, 16
        return {
            "x": _w((lambda *s: torch.randn(*s, dtype=torch.bfloat16) * 0.05)(B, S, D)),
            "wqkv": _w((lambda *s: torch.randn(*s, dtype=torch.bfloat16) * 0.05)(D, 3 * D)),
            "wo": _w((lambda *s: torch.randn(*s, dtype=torch.bfloat16) * 0.05)(D, D)),
        }
    _A_in = _A_setup()

    def _B_setup():
        B, S, D, F = 1, 2048, 448, 1792
        return {
            "x": _w((lambda *s: torch.randn(*s, dtype=torch.bfloat16) * 0.05)(B, S, D)),
            "w_gate": _w((lambda *s: torch.randn(*s, dtype=torch.bfloat16) * 0.05)(D, F)),
            "w_up": _w((lambda *s: torch.randn(*s, dtype=torch.bfloat16) * 0.05)(D, F)),
            "w_down": _w((lambda *s: torch.randn(*s, dtype=torch.bfloat16) * 0.05)(F, D)),
        }
    _B_in = _B_setup()

    return {
        "A_x": _A_in["x"],
        "A_wqkv": _A_in["wqkv"],
        "A_wo": _A_in["wo"],
        "B_x": _B_in["x"],
        "B_w_gate": _B_in["w_gate"],
        "B_w_up": _B_in["w_up"],
        "B_w_down": _B_in["w_down"],
    }

def reference(A_x, A_wqkv, A_wo, B_x, B_w_gate, B_w_up, B_w_down):
    def _A_ref(x, wqkv, wo):
        B, S, D = x.shape
        H = 16
        Dh = D // H
        qkv = (lambda x, *d: x.permute(*d))((x @ wqkv).reshape(B, S, 3, H, Dh), 2, 0, 3, 1, 4)
        q, k, v = qkv[0], qkv[1], qkv[2]
        scores = torch.einsum("bhqd,bhkd->bhqk", q, k) * (Dh ** -0.5)
        p = _softmax(scores, axis=-1)
        o = torch.einsum("bhqk,bhkd->bhqd", p, v)
        return (lambda x, *d: x.permute(*d))(o, 0, 2, 1, 3).reshape(B, S, D) @ wo

    def _B_ref(x, w_gate, w_up, w_down):
        g = torch.einsum("bsd,df->bsf", x, w_gate)
        u = torch.einsum("bsd,df->bsf", x, w_up)
        h = _sigmoid(g) * u
        return torch.einsum("bsf,fd->bsd", h, w_down)

    x = A_x
    x = x + _A_ref(_layernorm(x, axis=-1), A_wqkv, A_wo)
    x = x + _B_ref(_layernorm(x, axis=-1), B_w_gate, B_w_up, B_w_down)
    x = x + _A_ref(_layernorm(x, axis=-1), A_wqkv, A_wo)
    x = x + _B_ref(_layernorm(x, axis=-1), B_w_gate, B_w_up, B_w_down)
    return x
```

```python
import re

_RANGE = re.compile(r"^(v|s|a)\[(\d+):(\d+)\]$")
_SINGLE = re.compile(r"^(v|s|a)(\d+)$")


def vreg(i, n=1):
    return f"v{i}" if n == 1 else f"v[{i}:{i + n - 1}]"


def sreg(i, n=1):
    return f"s{i}" if n == 1 else f"s[{i}:{i + n - 1}]"


def parse_reg(tok):
    t = tok.strip()
    if t.startswith("-"):
        t = t[1:]
    if t.startswith("|") and t.endswith("|"):
        t = t[1:-1]
    if t.startswith("abs(") and t.endswith(")"):
        t = t[4:-1]
    if t == "vcc":
        return "s", {"vcc"}
    if t in ("vcc_lo", "vcc_hi"):
        return "s", {"vcc"}
    if t == "exec":
        return "s", {"exec"}
    if t == "m0":
        return "s", {"m0"}
    m = _SINGLE.match(t)
    if m:
        return m.group(1), {int(m.group(2))}
    m = _RANGE.match(t)
    if m:
        return m.group(1), set(range(int(m.group(2)), int(m.group(3)) + 1))
    return None, set()


TRANS = ("v_exp_f32", "v_log_f32", "v_rcp_f32", "v_rsq_f32", "v_sqrt_f32", "v_sin_f32", "v_cos_f32",
         "v_rcp_iflag_f32")


class Ins:
    __slots__ = ("text", "kind", "vr", "vw", "sr", "sw", "dpp", "perm", "rdlane", "passes", "mc", "wide_store")

    def __init__(self, text, kind, vr=(), vw=(), sr=(), sw=(), dpp=False, perm=False, rdlane=False,
                 passes=0, mc=None, wide_store=False):
        self.text, self.kind = text, kind
        self.vr, self.vw, self.sr, self.sw = set(vr), set(vw), set(sr), set(sw)
        self.dpp, self.perm, self.rdlane, self.passes = dpp, perm, rdlane, passes
        self.mc = mc
        self.wide_store = wide_store


class Kernel:
    def __init__(self, name):
        self.name = name
        self.lines = []
        self.hist = []
        self.vmq = []
        self.lgq = []
        self.smem_out = False
        self.nlabel = 0
        self.check_waits = True

    def raw(self, text):
        self.lines.append(text)

    def comment(self, text):
        self.lines.append("    ; " + text)

    def label(self, name):
        self.lines.append(name + ":")

    def newlabel(self, base="L"):
        self.nlabel += 1
        return f"{self.name}_{base}{self.nlabel}"

    def classify(self, text):
        t = text.strip()
        mn = t.split()[0]
        rest = t[len(mn):].strip()
        ops = [o.strip() for o in rest.split(",")] if rest else []
        mods = ""
        if ops:
            last = ops[-1].split()
            if len(last) > 1:
                ops[-1] = last[0]
                mods = " ".join(last[1:])
        dpp = ("quad_perm" in mods) or ("row_" in mods) or ("wave_" in mods)

        def regs(tok, want):
            k, s = parse_reg(tok)
            return s if k == want else set()

        def allv(tl):
            r = set()
            for x in tl:
                r |= regs(x, "v")
            return r

        def alls(tl):
            r = set()
            for x in tl:
                r |= regs(x, "s")
            return r

        if mn.startswith("v_mfma"):
            passes = 8 if "32x32" in mn else 4
            d, a, b, c = ops[0], ops[1], ops[2], ops[3]
            return Ins(t, "mfma", vr=allv([a, b, c]), vw=allv([d]), passes=passes, mc=allv([c]))
        if mn.startswith("v_cmp"):
            return Ins(t, "valu", vr=allv(ops[1:]), sr=alls(ops[1:]), sw=alls(ops[:1]))
        if mn in ("v_readfirstlane_b32", "v_readlane_b32"):
            return Ins(t, "valu", vr=allv(ops[1:]), sr=alls(ops[1:]), sw=alls(ops[:1]), rdlane=True)
        if mn.startswith("v_permlane"):
            r = allv(ops)
            return Ins(t, "valu", vr=r, vw=r, perm=True)
        if mn.startswith("v_"):
            kind = "trans" if mn.split("_e")[0] in TRANS or mn in TRANS else "valu"
            vr = allv(ops[1:])
            sr = alls(ops[1:])
            sw = set()
            if mn.startswith("v_fmac") or mn.startswith("v_pk_fmac") or mn.startswith("v_dot2c"):
                vr |= allv(ops[:1])
            if mn.startswith("v_cndmask") and len(ops) == 3:
                sr |= {"vcc"}
            if mn.startswith("v_add_co") or mn.startswith("v_sub_co") or mn.startswith("v_addc_co"):
                sw |= alls(ops[1:2])
                vr = allv(ops[2:])
                sr = alls(ops[2:])
            if mn.startswith("v_writelane"):
                vr |= allv(ops[:1])
            return Ins(t, kind, vr=vr, vw=allv(ops[:1]), sr=sr, sw=sw, dpp=dpp)
        if mn.startswith("ds_read") or mn.startswith("ds_bpermute") or mn.startswith("ds_swizzle") \
                or mn.startswith("ds_permute"):
            return Ins(t, "ds_read", vr=allv(ops[1:]), vw=allv(ops[:1]))
        if mn.startswith("ds_write"):
            return Ins(t, "ds_write", vr=allv(ops))
        if mn.startswith("buffer_load"):
            return Ins(t, "vmem_load", vr=allv(ops[1:2]), vw=allv(ops[:1]), sr=alls(ops[2:]))
        if mn.startswith("buffer_store"):
            wide = "x3" in mn or "x4" in mn
            return Ins(t, "vmem_store", vr=allv(ops[:2]), sr=alls(ops[2:]), wide_store=wide,
                       mc=allv(ops[:1]))
        if mn.startswith("global_load"):
            return Ins(t, "vmem_load", vr=allv(ops[1:2]), vw=allv(ops[:1]), sr=alls(ops[2:]))
        if mn.startswith("global_store"):
            wide = "x3" in mn or "x4" in mn
            return Ins(t, "vmem_store", vr=allv(ops[:2]), sr=alls(ops[2:]), wide_store=wide,
                       mc=allv(ops[1:2]))
        if mn.startswith("s_load") or mn.startswith("s_buffer_load"):
            return Ins(t, "smem", sr=alls(ops[1:2]), sw=alls(ops[:1]))
        if mn.startswith("s_cmp"):
            return Ins(t, "salu", sr=alls(ops), sw={"scc"})
        if mn in ("s_branch", "s_cbranch_scc0", "s_cbranch_scc1", "s_cbranch_vccz", "s_cbranch_vccnz",
                  "s_cbranch_execz", "s_cbranch_execnz"):
            return Ins(t, "branch")
        if mn in ("s_barrier", "s_endpgm", "s_setprio", "s_sleep"):
            return Ins(t, "misc")
        if mn.startswith("s_"):
            return Ins(t, "salu", sr=alls(ops[1:]), sw=alls(ops[:1]))
        raise ValueError("unclassified instruction: " + t)

    def _needed(self, ins):
        need = 0
        dist = 0
        for prev, slots in reversed(self.hist):
            req = 0
            if prev.kind in ("valu", "trans"):
                if ins.kind == "mfma" and (prev.vw & ins.vr):
                    req = max(req, 2)
                if prev.kind == "trans" and ins.kind == "valu" and (prev.vw & (ins.vr | ins.vw)):
                    req = max(req, 1)
                if prev.kind == "trans" and ins.kind == "mfma" and (prev.vw & ins.vr):
                    req = max(req, 2)
                if ins.kind in ("valu", "trans") and (prev.sw & ins.sr):
                    req = max(req, 2)
                if ins.kind in ("vmem_load", "vmem_store") and (prev.sw & ins.sr):
                    req = max(req, 5)
                if ins.rdlane and (prev.vw & ins.vr):
                    req = max(req, 1)
                if (ins.dpp or ins.perm) and (prev.vw & ins.vr):
                    req = max(req, 2)
            elif prev.kind == "mfma":
                big = 12 if prev.passes == 8 else 8
                if ins.kind in ("valu", "trans") and (prev.vw & (ins.vr | ins.vw)):
                    req = max(req, big)
                if ins.kind in ("vmem_store", "ds_write", "vmem_load", "ds_read") and (prev.vw & (ins.vr | ins.vw)):
                    req = max(req, big)
                if ins.kind == "mfma":
                    ab = ins.vr - ins.mc
                    if prev.vw & ab:
                        req = max(req, big)
                    if prev.vw & ins.mc:
                        if prev.vw == ins.mc and prev.passes == ins.passes:
                            pass
                        else:
                            req = max(req, 10 if prev.passes == 8 else 6)
                if ins.kind in ("valu", "trans") and (prev.mc & ins.vw):
                    req = max(req, 7 if prev.passes == 8 else 3)
            elif prev.kind == "vmem_store":
                if prev.wide_store and (prev.mc & ins.vw):
                    req = max(req, 2)
            if req > dist:
                need = max(need, req - dist)
            dist += slots
            if dist >= 16:
                break
        return need

    def _push(self, ins, slots=1):
        self.hist.append((ins, slots))
        if len(self.hist) > 40:
            self.hist.pop(0)

    def nop(self, n):
        while n > 0:
            m = min(n, 16)
            self.lines.append(f"    s_nop {m - 1}")
            self._push(Ins("s_nop", "misc"), m)
            n -= m

    def _wait_for(self, ins):
        touched = ins.vr | ins.vw
        vm_n = None
        for idx, dst in enumerate(self.vmq):
            if dst & touched:
                n = len(self.vmq) - 1 - idx
                vm_n = n if vm_n is None else min(vm_n, n)
        lg_n = None
        for idx, dst in enumerate(self.lgq):
            if dst & touched:
                n = len(self.lgq) - 1 - idx
                lg_n = n if lg_n is None else min(lg_n, n)
        if vm_n is not None or lg_n is not None:
            self.waitcnt(vm_n, lg_n)

    def waitcnt(self, vm=None, lg=None):
        parts = []
        if vm is not None:
            vm = min(vm, 63)
            parts.append(f"vmcnt({vm})")
            keep = vm
            self.vmq = self.vmq[len(self.vmq) - keep:] if keep else []
        if lg is not None:
            lg = min(lg, 15)
            if self.smem_out:
                lg = 0
                self.smem_out = False
            parts.append(f"lgkmcnt({lg})")
            keep = lg
            self.lgq = self.lgq[len(self.lgq) - keep:] if keep else []
        if parts:
            self.lines.append("    s_waitcnt " + " ".join(parts))
            self._push(Ins("s_waitcnt", "misc"), 1)

    def wait_all(self):
        self.waitcnt(0, 0)

    def i(self, text):
        ins = self.classify(text)
        if ins.kind in ("valu", "trans", "mfma", "ds_read", "ds_write", "vmem_load", "vmem_store"):
            self._wait_for(ins)
        if ins.kind == "salu" and self.smem_out:
            self.waitcnt(lg=0)
        n = self._needed(ins)
        if n:
            self.nop(n)
        self.lines.append("    " + ins.text)
        self._push(ins, 1)
        if ins.kind in ("vmem_load",):
            self.vmq.append(set(ins.vw))
        elif ins.kind == "vmem_store":
            self.vmq.append(set())
        elif ins.kind == "ds_read":
            self.lgq.append(set(ins.vw))
        elif ins.kind == "ds_write":
            self.lgq.append(set())
        elif ins.kind == "smem":
            self.smem_out = True
        return ins

    def flush_hazards(self, n=12):
        dist = 0
        need = 0
        for prev, slots in reversed(self.hist):
            req = 0
            if prev.kind == "mfma":
                req = 12 if prev.passes == 8 else 8
            elif prev.kind in ("valu", "trans"):
                req = 5
            elif prev.kind == "vmem_store" and prev.wide_store:
                req = 2
            if req > dist:
                need = max(need, req - dist)
            dist += slots
            if dist >= 16:
                break
        if need:
            self.nop(need)

    def snapshot(self):
        return list(self.hist)

    def merge(self, snap):
        cur = self.hist
        n1 = self._flush_need()
        self.hist = snap
        n2 = self._flush_need()
        self.hist = cur
        n = max(n1, n2)
        if n:
            self.nop(n)

    def _flush_need(self):
        dist = 0
        need = 0
        for prev, slots in reversed(self.hist):
            req = 0
            if prev.kind == "mfma":
                req = 12 if prev.passes == 8 else 8
            elif prev.kind in ("valu", "trans"):
                req = 5
            elif prev.kind == "vmem_store" and prev.wide_store:
                req = 2
            if req > dist:
                need = max(need, req - dist)
            dist += slots
            if dist >= 16:
                break
        return need

    def barrier(self):
        self.waitcnt(lg=0)
        self.i("s_barrier")

    def sig(self):
        return ([frozenset(x) for x in self.vmq], [frozenset(x) for x in self.lgq])

    def endpgm(self):
        self.lines.append("    s_endpgm")

    def text(self):
        return "\n".join(self.lines) + "\n"


def kernel_text(k, nvgpr, nsgpr, accum_offset=None):
    if accum_offset is None:
        accum_offset = (nvgpr + 3) // 4 * 4
    head = (f".text\n.globl {k.name}\n.p2align 8\n.type {k.name},@function\n{k.name}:\n")
    body = k.text()
    desc = (f'.section .rodata,"a"\n.p2align 6\n.amdhsa_kernel {k.name}\n'
            f"  .amdhsa_next_free_vgpr {nvgpr}\n  .amdhsa_next_free_sgpr {nsgpr}\n"
            f"  .amdhsa_accum_offset {accum_offset}\n  .amdhsa_group_segment_fixed_size 0\n"
            f"  .amdhsa_kernarg_size 80\n  .amdhsa_user_sgpr_count 2\n"
            f"  .amdhsa_user_sgpr_kernarg_segment_ptr 1\n  .amdhsa_system_sgpr_workgroup_id_x 1\n"
            f".end_amdhsa_kernel\n")
    return head + body + desc
```

```python
from asmlib import Kernel, kernel_text, vreg, sreg

S, D, H, DH, F = 2048, 448, 16, 28, 1792
EPS = 1e-5

KA_X, KA_WQKV, KA_WO, KA_BX, KA_WG, KA_WU, KA_WD, KA_OUT, KA_DBG, KA_WS = 0, 8, 16, 24, 32, 40, 48, 56, 64, 72

WS_WQKV_F = 0x0000000
SZ_WQKV_F = 48 * 28 * 1024
WS_WO_F = 0x0160000
SZ_WO_F = 14 * 28 * 1024
WS_WG_F = 0x0200000
SZ_WG_F = 56 * 28 * 1024
WS_WU_F = 0x0400000
WS_WD_F = 0x0600000
SZ_WD_F = 14 * 112 * 1024
WS_CS_QKV = 0x07C0000
WS_CS_G = 0x07C2000
WS_CS_U = 0x07C4000
WS_Q = 0x0800000
SZ_QK = 16 * 2048 * 32 * 2
WS_K = 0x0A00000
WS_VT = 0x0C00000
SZ_VT = 16 * 128 * 1024
WS_O_F = 0x0E00000
SZ_O_F = 64 * 28 * 1024
WS_X1 = 0x1000000
WS_X2 = 0x1200000
WS_X3 = 0x1400000
SZ_X = S * D * 2
WS_H_F = 0x1600000
SZ_H_F = 64 * 112 * 1024
WS_ST0 = 0x1E00000
WS_ST1 = 0x1E40000
WS_ST2 = 0x1E80000
WS_ST3 = 0x1EC0000
SZ_ST = S * 14 * 2 * 4


def magic(d, maxn):
    for s in range(32, 48):
        m = (1 << s) // d + 1
        if m >= (1 << 32):
            continue
        ok = all(((n * m) >> s) == n // d for n in range(0, maxn + 1))
        if ok:
            return m, s
    raise ValueError


def s_div(k, dst, src, d, maxn, tmp):
    m, s = magic(d, maxn)
    k.i(f"s_mov_b32 s{tmp}, {m}")
    k.i(f"s_mul_hi_u32 s{dst}, s{src}, s{tmp}")
    if s > 32:
        k.i(f"s_lshr_b32 s{dst}, s{dst}, {s - 32}")


def load_ptr(k, sdst, kaoff):
    k.i(f"s_load_dwordx2 s[{sdst}:{sdst + 1}], s[0:1], {kaoff}")


def make_srd(k, sdst, sptr, off, size):
    if off:
        k.i(f"s_add_u32 s{sdst}, s{sptr}, {off}")
        k.i(f"s_addc_u32 s{sdst + 1}, s{sptr + 1}, 0")
    else:
        k.i(f"s_mov_b32 s{sdst}, s{sptr}")
        k.i(f"s_mov_b32 s{sdst + 1}, s{sptr + 1}")
    k.i(f"s_mov_b32 s{sdst + 2}, {size}")
    k.i(f"s_mov_b32 s{sdst + 3}, 0x00020000")


def exit_if_ge(k, sreg_, limit):
    k.i(f"s_cmp_ge_u32 s{sreg_}, {limit}")
    lab = k.newlabel("go")
    k.i(f"s_cbranch_scc0 {lab}")
    k.endpgm()
    k.label(lab)


def wave_id(k, sdst, vtmp):
    k.i(f"v_lshrrev_b32 v{vtmp}, 6, v0")
    k.i(f"v_readfirstlane_b32 s{sdst}, v{vtmp}")
```

```python
from common import *

LDS_A_STRIDE = 912
LDS_A_BYTES = 128 * LDS_A_STRIDE
LDS_RSTD = 0
LDS_MR = 512
LDS_A0 = 1024
LDS_K14_TOTAL = LDS_A_BYTES + 1024

assert all(((ci * 9363) >> 19) == ci // 56 for ci in range(7168))


def stage_x_and_stats(k, s_x_srd, s_st_srd, s_row0, vt0):
    k.i("v_lshlrev_b32 v3, 4, v0")
    k.i(f"s_mul_i32 s40, s{s_row0}, 896")
    for half in range(2):
        for i in range(14):
            ii = half * 14 + i
            k.i(f"s_add_u32 s41, s40, {ii * 4096}")
            k.i(f"buffer_load_dwordx4 v[{vt0 + 4 * i}:{vt0 + 4 * i + 3}], v3, s[{s_x_srd}:{s_x_srd + 3}], s41 offen")
        for i in range(14):
            ii = half * 14 + i
            k.i(f"v_add_u32 v4, {ii * 256}, v0")
            k.i("v_mul_u32_u24 v5, 9363, v4")
            k.i("v_lshrrev_b32 v5, 19, v5")
            k.i("v_add_lshl_u32 v4, v4, v5, 4")
            k.i(f"ds_write_b128 v4, v[{vt0 + 4 * i}:{vt0 + 4 * i + 3}] offset:{LDS_A0}")
    k.i("v_cmp_gt_u32 vcc, 128, v0")
    k.i("s_and_saveexec_b64 s[42:43], vcc")
    lab = k.newlabel("st")
    k.i(f"s_cbranch_execz {lab}")
    k.i(f"v_add_u32 v4, s{s_row0}, v0")
    k.i("v_mul_u32_u24 v4, 112, v4")
    for i in range(7):
        k.i(f"buffer_load_dwordx4 v[{vt0 + 4 * i}:{vt0 + 4 * i + 3}], v4, s[{s_st_srd}:{s_st_srd + 3}], 0 offen offset:{16 * i}")
    k.i("v_mov_b32 v5, 0")
    k.i("v_mov_b32 v6, 0")
    for i in range(14):
        k.i(f"v_add_f32 v5, v5, v{vt0 + 2 * i}")
        k.i(f"v_add_f32 v6, v6, v{vt0 + 2 * i + 1}")
    k.i(f"v_mul_f32 v5, {1.0 / 448!r}, v5")
    k.i(f"v_mul_f32 v6, {1.0 / 448!r}, v6")
    k.i("v_fma_f32 v6, -v5, v5, v6")
    k.i("v_max_f32 v6, 0, v6")
    k.i(f"v_add_f32 v6, {EPS!r}, v6")
    k.i("v_rsq_f32 v6, v6")
    k.i("v_mul_f32 v5, v5, v6")
    k.i("v_lshlrev_b32 v4, 2, v0")
    k.i(f"ds_write_b32 v4, v6 offset:{LDS_RSTD}")
    k.i(f"ds_write_b32 v4, v5 offset:{LDS_MR}")
    k.label(lab)
    k.i("s_mov_b64 exec, s[42:43]")
    k.barrier()


def build_k1(name, layer):
    k = Kernel(name)
    exit_if_ge(k, 2, 192)
    load_ptr(k, 4, KA_WS)
    if layer == 1:
        load_ptr(k, 6, KA_X)
    k.waitcnt(lg=0)
    if layer == 1:
        make_srd(k, 12, 6, 0, SZ_X)
    else:
        make_srd(k, 12, 4, WS_X2, SZ_X)
    make_srd(k, 16, 4, WS_WQKV_F, SZ_WQKV_F)
    make_srd(k, 20, 4, WS_ST0 if layer == 1 else WS_ST2, SZ_ST)
    make_srd(k, 24, 4, WS_CS_QKV, 1536 * 4)
    wave_id(k, 32, 1)
    k.i("s_lshr_b32 s30, s2, 4")
    k.i("s_and_b32 s31, s2, 15")
    k.i("s_lshl_b32 s34, s31, 7")
    k.i("s_lshl_b32 s33, s30, 2")
    k.i("s_add_u32 s33, s33, s32")
    k.i("s_mul_i32 s35, s33, 28672")
    k.i("v_and_b32 v1, 63, v0")
    k.i("v_lshlrev_b32 v2, 4, v1")
    VB = 16
    for ks in range(28):
        if ks % 4 == 0:
            k.i(f"s_add_u32 s36, s35, {ks * 1024}")
        k.i(f"buffer_load_dwordx4 v[{VB + 4 * ks}:{VB + 4 * ks + 3}], v2, s[16:19], s36 offen offset:{(ks % 4) * 1024}")
    stage_x_and_stats(k, 12, 20, 34, 128)
    ACC = 128
    AF = [192, 208]
    k.i("v_and_b32 v3, 31, v1")
    k.i(f"v_mul_u32_u24 v3, {LDS_A_STRIDE}, v3")
    k.i("v_lshrrev_b32 v4, 5, v1")
    k.i("v_lshl_add_u32 v8, v4, 4, v3")
    k.i(f"v_add_u32 v9, {2 * 32 * LDS_A_STRIDE}, v8")

    def aload(ks, buf):
        for mt in range(4):
            base = 8 if mt < 2 else 9
            off = LDS_A0 + (mt % 2) * 32 * LDS_A_STRIDE + ks * 32
            k.i(f"ds_read_b128 v[{AF[buf] + 4 * mt}:{AF[buf] + 4 * mt + 3}], v{base} offset:{off}")

    def mainloop(vpath):
        aload(0, 0)
        for ks in range(28):
            if ks + 1 < 28:
                aload(ks + 1, (ks + 1) % 2)
            for mt in range(4):
                a = f"v[{AF[ks % 2] + 4 * mt}:{AF[ks % 2] + 4 * mt + 3}]"
                b = f"v[{VB + 4 * ks}:{VB + 4 * ks + 3}]"
                acc = f"v[{ACC + 16 * mt}:{ACC + 16 * mt + 15}]"
                c = "0" if ks == 0 else acc
                if vpath:
                    k.i(f"v_mfma_f32_32x32x16_bf16 {acc}, {a}, {b}, {c}")
                else:
                    k.i(f"v_mfma_f32_32x32x16_bf16 {acc}, {b}, {a}, {c}")

    l_v = k.newlabel("vpath")
    k.i("s_cmp_ge_u32 s30, 8")
    k.i(f"s_cbranch_scc1 {l_v}")
    mainloop(False)
    k.i("s_cmp_lt_u32 s30, 4")
    k.i(f"s_mov_b32 s36, {WS_K}")
    k.i(f"s_cselect_b32 s36, {WS_Q}, s36")
    k.i("s_add_u32 s28, s4, s36")
    k.i("s_addc_u32 s29, s5, 0")
    k.i(f"s_mov_b32 s30, {SZ_QK}")
    k.i("s_mov_b32 s31, 0x00020000")
    k.i("s_and_b32 s36, s33, 15")
    k.i("s_lshl_b32 s36, s36, 17")
    k.i("v_lshrrev_b32 v4, 5, v1")
    k.i("v_lshlrev_b32 v4, 4, v4")
    k.i("s_lshl_b32 s37, s33, 7")
    CS = 16
    for qd in range(4):
        k.i(f"buffer_load_dwordx4 v[{CS + 4 * qd}:{CS + 4 * qd + 3}], v4, s[24:27], s37 offen offset:{32 * qd}")
    k.i("v_and_b32 v5, 31, v1")
    k.i("v_lshlrev_b32 v5, 2, v5")
    RS, MR = 32, 36
    for mt in range(4):
        k.i(f"ds_read_b32 v{RS + mt}, v5 offset:{LDS_RSTD + 128 * mt}")
        k.i(f"ds_read_b32 v{MR + mt}, v5 offset:{LDS_MR + 128 * mt}")
    k.i("v_and_b32 v5, 31, v1")
    k.i("v_add_u32 v5, s34, v5")
    k.i("v_lshlrev_b32 v5, 6, v5")
    k.i("v_lshrrev_b32 v6, 5, v1")
    k.i("v_lshl_add_u32 v5, v6, 3, v5")
    for mt in range(4):
        for qd in range(4):
            for i in range(4):
                a = ACC + 16 * mt + 4 * qd + i
                k.i(f"v_mul_f32 v{a}, v{a}, v{RS + mt}")
                k.i(f"v_fma_f32 v{a}, -v{MR + mt}, v{CS + 4 * qd + i}, v{a}")
            a = ACC + 16 * mt + 4 * qd
            k.i(f"v_cvt_pk_bf16_f32 v40, v{a}, v{a + 1}")
            k.i(f"v_cvt_pk_bf16_f32 v41, v{a + 2}, v{a + 3}")
            k.i(f"buffer_store_dwordx2 v[40:41], v5, s[28:31], s36 offen offset:{qd * 16}")
        k.i("s_add_u32 s36, s36, 2048")
    k.endpgm()
    k.label(l_v)
    mainloop(True)
    make_srd(k, 28, 4, WS_VT, SZ_VT)
    k.i("s_sub_u32 s36, s33, 32")
    k.i("s_lshl_b32 s36, s36, 17")
    k.i("s_lshl_b32 s37, s34, 6")
    k.i("s_add_u32 s36, s36, s37")
    k.i("v_and_b32 v4, 31, v1")
    k.i("v_lshlrev_b32 v4, 2, v4")
    k.i("s_lshl_b32 s37, s33, 7")
    k.i("buffer_load_dword v16, v4, s[24:27], s37 offen")
    k.i("v_and_b32 v4, 31, v1")
    k.i("v_cmp_eq_u32 vcc, 28, v4")
    k.i("v_mov_b32 v17, 0x3f803f80")
    k.i("v_lshrrev_b32 v5, 5, v1")
    k.i("v_lshlrev_b32 v5, 4, v5")
    for mt in range(4):
        for b in range(2):
            for jh in range(2):
                qd = 2 * b + jh
                off = (mt * 32 + qd * 8) * 4
                k.i(f"ds_read_b128 v[{20 + 8 * jh}:{23 + 8 * jh}], v5 offset:{LDS_RSTD + off}")
                k.i(f"ds_read_b128 v[{24 + 8 * jh}:{27 + 8 * jh}], v5 offset:{LDS_MR + off}")
                for i in range(4):
                    a = ACC + 16 * mt + 4 * qd + i
                    k.i(f"v_mul_f32 v{a}, v{a}, v{20 + 8 * jh + i}")
                    k.i(f"v_fma_f32 v{a}, -v{24 + 8 * jh + i}, v16, v{a}")
                a = ACC + 16 * mt + 4 * qd
                k.i(f"v_cvt_pk_bf16_f32 v{40 + 2 * jh}, v{a}, v{a + 1}")
                k.i(f"v_cvt_pk_bf16_f32 v{41 + 2 * jh}, v{a + 2}, v{a + 3}")
            for r in range(4):
                k.i(f"v_cndmask_b32 v{40 + r}, v{40 + r}, v17, vcc")
            kb = mt * 2 + b
            k.i(f"buffer_store_dwordx4 v[40:43], v2, s[28:31], s36 offen offset:{(kb % 4) * 1024}")
            if kb == 3:
                k.i("s_add_u32 s36, s36, 4096")
    k.endpgm()
    return kernel_text(k, 256, 64), (name, 192, 256, LDS_K14_TOTAL)


def build_layers():
    out = []
    out.append(build_k1("k1a_kernel", 1))
    return out


import math
ATT_C = (28 ** -0.5) * math.log2(math.e)
LDS_ATT = 1024 + 32768


def build_k2(name):
    k = Kernel(name)
    exit_if_ge(k, 2, 512)
    load_ptr(k, 4, KA_WS)
    k.waitcnt(lg=0)
    make_srd(k, 12, 4, WS_Q, SZ_QK)
    make_srd(k, 16, 4, WS_K, SZ_QK)
    make_srd(k, 20, 4, WS_VT, SZ_VT)
    make_srd(k, 24, 4, WS_O_F, SZ_O_F)
    wave_id(k, 32, 1)
    k.i("s_lshr_b32 s30, s2, 5")
    k.i("s_and_b32 s31, s2, 31")
    k.i("s_lshl_b32 s33, s30, 17")
    k.i("v_and_b32 v1, 63, v0")
    k.i("v_and_b32 v2, 31, v1")
    k.i("v_lshlrev_b32 v2, 6, v2")
    k.i("v_lshrrev_b32 v3, 5, v1")
    k.i("v_lshl_add_u32 v2, v3, 4, v2")
    k.i("v_lshlrev_b32 v3, 4, v1")
    QF, OA, SA, PP = 16, 32, 64, 96
    KF = [112, 120]
    VF = [128, 136]
    MC = 144
    k.i("s_lshl_b32 s34, s31, 12")
    k.i("s_add_u32 s34, s34, s33")
    for qt in range(2):
        for kk in range(2):
            r = QF + qt * 8 + kk * 4
            k.i(f"buffer_load_dwordx4 v[{r}:{r + 3}], v2, s[12:15], s34 offen offset:{qt * 2048 + kk * 32}")
    k.i("s_lshl_b32 s35, s32, 15")
    k.i("s_add_u32 s35, s35, s33")
    k.i("s_lshl_b32 s36, s32, 15")
    k.i("s_add_u32 s36, s36, s33")
    k.i(f"s_mov_b32 s40, {ATT_C!r}")

    def kvload(buf):
        for kk in range(2):
            r = KF[buf] + kk * 4
            k.i(f"buffer_load_dwordx4 v[{r}:{r + 3}], v2, s[16:19], s35 offen offset:{kk * 32}")
        for b in range(2):
            r = VF[buf] + b * 4
            k.i(f"buffer_load_dwordx4 v[{r}:{r + 3}], v3, s[20:23], s36 offen offset:{b * 1024}")
        k.i("s_add_u32 s35, s35, 2048")
        k.i("s_add_u32 s36, s36, 2048")

    for r in range(32):
        k.i(f"v_mov_b32 v{OA + r}, 0")
    k.i(f"v_mov_b32 v{MC}, -1e30")
    k.i(f"v_mov_b32 v{MC + 1}, -1e30")
    k.wait_all()
    kvload(0)
    k.i("s_mov_b32 s37, 0")
    loop = k.newlabel("loop")
    k.flush_hazards()
    k.label(loop)
    sig0 = k.sig()

    def step(buf):
        kvload(1 - buf)
        for qt in range(2):
            s = SA + 16 * qt
            for kk in range(2):
                c = "0" if kk == 0 else f"v[{s}:{s + 15}]"
                k.i(f"v_mfma_f32_32x32x16_bf16 v[{s}:{s + 15}], v[{KF[buf] + 4 * kk}:{KF[buf] + 4 * kk + 3}], "
                    f"v[{QF + 8 * qt + 4 * kk}:{QF + 8 * qt + 4 * kk + 3}], {c}")
        for qt in range(2):
            s = SA + 16 * qt
            t, tA, tB = 146, 147, 148
            k.i(f"v_max3_f32 v{t}, v{s}, v{s + 1}, v{s + 2}")
            for j in range(3, 15, 2):
                k.i(f"v_max3_f32 v{t}, v{t}, v{s + j}, v{s + j + 1}")
            k.i(f"v_max_f32 v{t}, v{t}, v{s + 15}")
            k.i(f"v_mov_b32 v{tA}, v{t}")
            k.i(f"v_mov_b32 v{tB}, v{t}")
            k.i(f"v_permlane32_swap_b32 v{tA}, v{tB}")
            k.i(f"v_max_f32 v{t}, v{tA}, v{tB}")
            k.i(f"v_mul_f32 v{t}, s40, v{t}")
            k.i(f"v_max_f32 v{t}, v{MC + qt}, v{t}")
            k.i(f"v_cmp_gt_f32 vcc, v{t}, v{MC + qt}")
            skip = k.newlabel("skip")
            snap = k.snapshot()
            k.i(f"s_cbranch_vccz {skip}")
            k.i(f"v_sub_f32 v{tA}, v{MC + qt}, v{t}")
            k.i(f"v_exp_f32 v{tA}, v{tA}")
            for r in range(16):
                k.i(f"v_mul_f32 v{OA + 16 * qt + r}, v{OA + 16 * qt + r}, v{tA}")
            k.label(skip)
            k.merge(snap)
            k.i(f"v_mov_b32 v{MC + qt}, v{t}")
            for r in range(16):
                k.i(f"v_fma_f32 v{s + r}, v{s + r}, s40, -v{t}")
            for r in range(16):
                k.i(f"v_exp_f32 v{s + r}, v{s + r}")
            for r in range(8):
                k.i(f"v_cvt_pk_bf16_f32 v{PP + 8 * qt + r}, v{s + 2 * r}, v{s + 2 * r + 1}")
            o = OA + 16 * qt
            for b in range(2):
                k.i(f"v_mfma_f32_32x32x16_bf16 v[{o}:{o + 15}], v[{VF[buf] + 4 * b}:{VF[buf] + 4 * b + 3}], "
                    f"v[{PP + 8 * qt + 4 * b}:{PP + 8 * qt + 4 * b + 3}], v[{o}:{o + 15}]")

    step(0)
    step(1)
    k.i("s_add_u32 s37, s37, 1")
    k.i("s_cmp_lt_u32 s37, 8")
    k.flush_hazards()
    assert k.sig() == sig0, (k.sig(), sig0)
    k.i(f"s_cbranch_scc1 {loop}")
    k.wait_all()
    k.i("v_and_b32 v4, 31, v1")
    k.i("v_lshlrev_b32 v4, 2, v4")
    k.i("s_lshl_b32 s38, s32, 8")
    k.i("v_add_u32 v5, s38, v4")
    k.i(f"ds_write_b32 v5, v{MC}")
    k.i(f"ds_write_b32 v5, v{MC + 1} offset:128")
    k.barrier()
    for w in range(4):
        k.i(f"ds_read_b32 v{146 + w}, v4 offset:{w * 256}")
        k.i(f"ds_read_b32 v{150 + w}, v4 offset:{w * 256 + 128}")
    k.i("v_max3_f32 v146, v146, v147, v148")
    k.i("v_max_f32 v146, v146, v149")
    k.i("v_max3_f32 v150, v150, v151, v152")
    k.i("v_max_f32 v150, v150, v153")
    k.i(f"v_sub_f32 v146, v{MC}, v146")
    k.i(f"v_sub_f32 v150, v{MC + 1}, v150")
    k.i("v_exp_f32 v146, v146")
    k.i("v_exp_f32 v150, v150")
    for r in range(16):
        k.i(f"v_mul_f32 v{OA + r}, v{OA + r}, v146")
        k.i(f"v_mul_f32 v{OA + 16 + r}, v{OA + 16 + r}, v150")
    k.i("s_lshl_b32 s38, s32, 13")
    k.i("v_add_u32 v5, s38, v3")
    for qt in range(2):
        for qd in range(4):
            r = OA + 16 * qt + 4 * qd
            k.i(f"ds_write_b128 v5, v[{r}:{r + 3}] offset:{1024 + (qt * 4 + qd) * 1024}")
    k.barrier()
    k.i("s_and_b32 s38, s32, 1")
    k.i("s_lshr_b32 s39, s32, 1")
    k.i("s_lshl_b32 s41, s38, 12")
    k.i("s_lshl_b32 s42, s39, 11")
    k.i("s_add_u32 s41, s41, s42")
    k.i("v_add_u32 v5, s41, v3")
    for w in range(4):
        for j in range(2):
            r = 64 + 8 * w + 4 * j
            k.i(f"ds_read_b128 v[{r}:{r + 3}], v5 offset:{1024 + w * 8192 + j * 1024}")
    k.i("v_and_b32 v6, 31, v1")
    k.i("v_lshlrev_b32 v6, 4, v6")
    k.i("s_lshl_b32 s41, s38, 12")
    k.i("v_add_u32 v6, s41, v6")
    for w in range(4):
        k.i(f"ds_read_b32 v{100 + w}, v6 offset:{1024 + w * 8192 + 3 * 1024 + 512}")
    for j in range(8):
        k.i(f"v_add_f32 v{64 + j}, v{64 + j}, v{72 + j}")
        k.i(f"v_add_f32 v{80 + j}, v{80 + j}, v{88 + j}")
        k.i(f"v_add_f32 v{64 + j}, v{64 + j}, v{80 + j}")
    k.i("v_add_f32 v100, v100, v101")
    k.i("v_add_f32 v102, v102, v103")
    k.i("v_add_f32 v100, v100, v102")
    k.i("v_rcp_f32 v100, v100")
    for j in range(8):
        k.i(f"v_mul_f32 v{64 + j}, v{64 + j}, v100")
    k.i("s_lshl_b32 s41, s31, 1")
    k.i("s_add_u32 s41, s41, s38")
    k.i("s_mul_i32 s41, s41, 28672")
    k.i("s_mul_i32 s42, s30, 28")
    k.i("s_lshl_b32 s43, s39, 4")
    k.i("s_add_u32 s42, s42, s43")
    k.i("v_lshrrev_b32 v7, 5, v1")
    k.i("v_lshlrev_b32 v7, 2, v7")
    k.i("v_and_b32 v8, 31, v1")
    for j in range(2):
        k.i(f"v_add_u32 v9, {8 * j}, v7")
        k.i("v_add_u32 v9, s42, v9")
        k.i("v_lshrrev_b32 v10, 4, v9")
        k.i("v_lshlrev_b32 v10, 10, v10")
        k.i("v_bfe_u32 v11, v9, 3, 1")
        k.i("v_lshl_add_u32 v11, v11, 5, v8")
        k.i("v_lshl_add_u32 v10, v11, 4, v10")
        k.i("v_and_b32 v11, 7, v9")
        k.i("v_lshl_add_u32 v10, v11, 1, v10")
        k.i(f"v_cvt_pk_bf16_f32 v12, v{64 + 4 * j}, v{65 + 4 * j}")
        k.i(f"v_cvt_pk_bf16_f32 v13, v{66 + 4 * j}, v{67 + 4 * j}")
        k.i("s_mul_i32 s43, s30, 28")
        k.i("v_subrev_u32 v14, s43, v9")
        k.i("v_cmp_gt_u32 vcc, 28, v14")
        k.i("s_and_saveexec_b64 s[44:45], vcc")
        k.i("buffer_store_dwordx2 v[12:13], v10, s[24:27], s41 offen")
        k.i("s_mov_b64 exec, s[44:45]")
    k.endpgm()
    return kernel_text(k, 160, 64), (name, 512, 256, LDS_ATT)


def build_k35(name, kind, layer):
    KS = 28 if kind == 3 else 112
    per = KS // 4
    k = Kernel(name)
    exit_if_ge(k, 2, 224)
    load_ptr(k, 4, KA_WS)
    if kind == 3 and layer == 1:
        load_ptr(k, 6, KA_X)
    if kind == 5 and layer == 2:
        load_ptr(k, 8, KA_OUT)
    k.waitcnt(lg=0)
    if kind == 3:
        make_srd(k, 12, 4, WS_O_F, SZ_O_F)
        make_srd(k, 16, 4, WS_WO_F, SZ_WO_F)
        if layer == 1:
            make_srd(k, 20, 6, 0, SZ_X)
        else:
            make_srd(k, 20, 4, WS_X2, SZ_X)
        make_srd(k, 24, 4, WS_X1 if layer == 1 else WS_X3, SZ_X)
        make_srd(k, 28, 4, WS_ST1 if layer == 1 else WS_ST3, SZ_ST)
        stats = True
    else:
        make_srd(k, 12, 4, WS_H_F, SZ_H_F)
        make_srd(k, 16, 4, WS_WD_F, SZ_WD_F)
        make_srd(k, 20, 4, WS_X1 if layer == 1 else WS_X3, SZ_X)
        if layer == 1:
            make_srd(k, 24, 4, WS_X2, SZ_X)
            make_srd(k, 28, 4, WS_ST2, SZ_ST)
        else:
            make_srd(k, 24, 8, 0, SZ_X)
        stats = layer == 1
    wave_id(k, 32, 1)
    s_div(k, 33, 2, 7, 224, 34)
    k.i("s_mul_i32 s34, s33, 7")
    k.i("s_sub_u32 s34, s2, s34")
    k.i("v_and_b32 v1, 63, v0")
    k.i("v_lshlrev_b32 v2, 4, v1")
    k.i("s_lshr_b32 s35, s32, 1")
    k.i("s_and_b32 s36, s32, 1")
    k.i("s_lshl_b32 s37, s33, 6")
    k.i("s_lshl_b32 s38, s35, 5")
    k.i("s_add_u32 s37, s37, s38")
    k.i("v_and_b32 v3, 31, v1")
    k.i("v_add_u32 v3, s37, v3")
    k.i("v_mul_u32_u24 v4, 896, v3")
    k.i("v_lshrrev_b32 v5, 5, v1")
    k.i("v_lshl_add_u32 v4, v5, 3, v4")
    k.i("s_lshl_b32 s38, s34, 7")
    k.i("s_lshl_b32 s39, s36, 6")
    k.i("s_add_u32 s38, s38, s39")
    RES = 8
    for qd in range(4):
        k.i(f"buffer_load_dwordx2 v[{RES + 2 * qd}:{RES + 2 * qd + 1}], v4, s[20:23], s38 offen offset:{qd * 16}")
    k.i(f"s_mul_i32 s40, s32, {per * 1024}")
    k.i(f"s_mul_i32 s41, s33, {2 * KS * 1024}")
    k.i("s_add_u32 s41, s41, s40")
    k.i(f"s_add_u32 s42, s41, {KS * 1024}")
    k.i(f"s_mul_i32 s43, s34, {2 * KS * 1024}")
    k.i("s_add_u32 s43, s43, s40")
    k.i(f"s_add_u32 s44, s43, {KS * 1024}")
    ACC = 16
    BUF = [80, 144]
    chunks = []
    i = 0
    while i < per:
        n = min(4, per - i)
        if per - i == 5:
            n = 3
        chunks.append(n)
        i += n

    def loadc(ci):
        base = BUF[ci % 2]
        for j in range(chunks[ci]):
            for t, sreg_ in enumerate((41, 42, 43, 44)):
                srd = 12 if t < 2 else 16
                r = base + 16 * j + 4 * t
                k.i(f"buffer_load_dwordx4 v[{r}:{r + 3}], v2, s[{srd}:{srd + 3}], s{sreg_} offen offset:{j * 1024}")
        for sreg_ in (41, 42, 43, 44):
            k.i(f"s_add_u32 s{sreg_}, s{sreg_}, {chunks[ci] * 1024}")

    loadc(0)
    first = True
    for ci in range(len(chunks)):
        if ci + 1 < len(chunks):
            loadc(ci + 1)
        base = BUF[ci % 2]
        for j in range(chunks[ci]):
            for mt in range(2):
                for nt in range(2):
                    acc = ACC + 16 * (mt * 2 + nt)
                    a = base + 16 * j + 4 * mt
                    b = base + 16 * j + 8 + 4 * nt
                    c = "0" if first else f"v[{acc}:{acc + 15}]"
                    k.i(f"v_mfma_f32_32x32x16_bf16 v[{acc}:{acc + 15}], v[{b}:{b + 3}], v[{a}:{a + 3}], {c}")
            first = False
    k.i("s_lshl_b32 s40, s32, 14")
    k.i("v_add_u32 v5, s40, v2")
    for t in range(4):
        for qd in range(4):
            r = ACC + 16 * t + 4 * qd
            k.i(f"ds_write_b128 v5, v[{r}:{r + 3}] offset:{t * 4096 + qd * 1024}")
    k.barrier()
    k.i("s_lshl_b32 s40, s32, 12")
    k.i("v_add_u32 v5, s40, v2")
    P = 80
    for src in range(4):
        for qd in range(4):
            r = P + 16 * src + 4 * qd
            k.i(f"ds_read_b128 v[{r}:{r + 3}], v5 offset:{src * 16384 + qd * 1024}")
    for r in range(16):
        k.i(f"v_add_f32 v{P + r}, v{P + r}, v{P + 16 + r}")
        k.i(f"v_add_f32 v{P + 32 + r}, v{P + 32 + r}, v{P + 48 + r}")
        k.i(f"v_add_f32 v{P + r}, v{P + r}, v{P + 32 + r}")
    if stats:
        k.i("v_mov_b32 v6, 0")
        k.i("v_mov_b32 v7, 0")
    k.i("v_mov_b32 v20, 0xffff0000")
    for qd in range(4):
        for h in range(2):
            rr = RES + 2 * qd + h
            k.i(f"v_lshlrev_b32 v16, 16, v{rr}")
            k.i(f"v_and_b32 v17, v20, v{rr}")
            k.i(f"v_add_f32 v{P + 4 * qd + 2 * h}, v{P + 4 * qd + 2 * h}, v16")
            k.i(f"v_add_f32 v{P + 4 * qd + 2 * h + 1}, v{P + 4 * qd + 2 * h + 1}, v17")
            k.i(f"v_cvt_pk_bf16_f32 v{18 + h}, v{P + 4 * qd + 2 * h}, v{P + 4 * qd + 2 * h + 1}")
            if stats:
                k.i(f"v_lshlrev_b32 v16, 16, v{18 + h}")
                k.i(f"v_and_b32 v17, v20, v{18 + h}")
                k.i("v_add_f32 v6, v6, v16")
                k.i("v_fma_f32 v7, v16, v16, v7")
                k.i("v_add_f32 v6, v6, v17")
                k.i("v_fma_f32 v7, v17, v17, v7")
        k.i(f"buffer_store_dwordx2 v[18:19], v4, s[24:27], s38 offen offset:{qd * 16}")
    if stats:
        k.i("v_mov_b32 v16, v6")
        k.i("v_mov_b32 v17, v7")
        k.i("v_permlane32_swap_b32 v6, v16")
        k.i("v_permlane32_swap_b32 v7, v17")
        k.i("v_add_f32 v6, v6, v16")
        k.i("v_add_f32 v7, v7, v17")
        k.i("v_mul_u32_u24 v5, 112, v3")
        k.i("s_lshl_b32 s40, s34, 4")
        k.i("s_lshl_b32 s41, s36, 3")
        k.i("s_add_u32 s40, s40, s41")
        k.i("v_cmp_gt_u32 vcc, 32, v1")
        k.i("s_and_saveexec_b64 s[44:45], vcc")
        k.i("buffer_store_dwordx2 v[6:7], v5, s[28:31], s40 offen")
    k.endpgm()
    return kernel_text(k, 208, 64), (name, 224, 256, 65536)


def build_k4(name, layer):
    k = Kernel(name)
    exit_if_ge(k, 2, 224)
    load_ptr(k, 4, KA_WS)
    k.waitcnt(lg=0)
    make_srd(k, 12, 4, WS_X1 if layer == 1 else WS_X3, SZ_X)
    make_srd(k, 16, 4, WS_WG_F, SZ_WG_F)
    make_srd(k, 20, 4, WS_ST1 if layer == 1 else WS_ST3, SZ_ST)
    make_srd(k, 24, 4, WS_CS_G, 1792 * 4)
    make_srd(k, 56, 4, WS_H_F, SZ_H_F)
    make_srd(k, 48, 4, WS_WU_F, SZ_WG_F)
    make_srd(k, 52, 4, WS_CS_U, 1792 * 4)
    wave_id(k, 32, 1)
    k.i("s_lshr_b32 s30, s2, 4")
    k.i("s_and_b32 s31, s2, 15")
    k.i("s_lshl_b32 s34, s31, 7")
    k.i("s_lshl_b32 s33, s30, 2")
    k.i("s_add_u32 s33, s33, s32")
    k.i("s_mul_i32 s35, s33, 28672")
    k.i("v_and_b32 v1, 63, v0")
    k.i("v_lshlrev_b32 v2, 4, v1")
    BB = [16, 48]
    AF = [80, 96]
    ACC = 112

    def bload(c):
        base = BB[c % 2]
        for j in range(4):
            k.i(f"buffer_load_dwordx4 v[{base + 8 * j}:{base + 8 * j + 3}], v2, s[16:19], s35 offen offset:{j * 1024}")
            k.i(f"buffer_load_dwordx4 v[{base + 8 * j + 4}:{base + 8 * j + 7}], v2, s[48:51], s35 offen offset:{j * 1024}")
        k.i("s_add_u32 s35, s35, 4096")

    bload(0)
    stage_x_and_stats(k, 12, 20, 34, ACC)
    k.i("v_and_b32 v3, 31, v1")
    k.i(f"v_mul_u32_u24 v3, {LDS_A_STRIDE}, v3")
    k.i("v_lshrrev_b32 v4, 5, v1")
    k.i("v_lshl_add_u32 v8, v4, 4, v3")
    k.i(f"v_add_u32 v9, {2 * 32 * LDS_A_STRIDE}, v8")

    def aload(ks, buf):
        for mt in range(4):
            base = 8 if mt < 2 else 9
            off = LDS_A0 + (mt % 2) * 32 * LDS_A_STRIDE + ks * 32
            k.i(f"ds_read_b128 v[{AF[buf] + 4 * mt}:{AF[buf] + 4 * mt + 3}], v{base} offset:{off}")

    aload(0, 0)
    for ks in range(28):
        c, j = ks // 4, ks % 4
        if j == 0 and c + 1 < 7:
            bload(c + 1)
        if ks + 1 < 28:
            aload(ks + 1, (ks + 1) % 2)
        for mt in range(4):
            a = f"v[{AF[ks % 2] + 4 * mt}:{AF[ks % 2] + 4 * mt + 3}]"
            for gu in range(2):
                b0 = BB[c % 2] + 8 * j + 4 * gu
                acc = ACC + 64 * gu + 16 * mt
                cc = "0" if ks == 0 else f"v[{acc}:{acc + 15}]"
                k.i(f"v_mfma_f32_32x32x16_bf16 v[{acc}:{acc + 15}], v[{b0}:{b0 + 3}], {a}, {cc}")
    k.i("v_lshrrev_b32 v4, 5, v1")
    k.i("v_lshlrev_b32 v4, 4, v4")
    k.i("s_lshl_b32 s37, s33, 7")
    CG, CU = 16, 32
    for qd in range(4):
        k.i(f"buffer_load_dwordx4 v[{CG + 4 * qd}:{CG + 4 * qd + 3}], v4, s[24:27], s37 offen offset:{32 * qd}")
        k.i(f"buffer_load_dwordx4 v[{CU + 4 * qd}:{CU + 4 * qd + 3}], v4, s[52:55], s37 offen offset:{32 * qd}")
    k.i("v_and_b32 v5, 31, v1")
    k.i("v_lshlrev_b32 v5, 2, v5")
    RS, MR = 48, 52
    for mt in range(4):
        k.i(f"ds_read_b32 v{RS + mt}, v5 offset:{LDS_RSTD + 128 * mt}")
        k.i(f"ds_read_b32 v{MR + mt}, v5 offset:{LDS_MR + 128 * mt}")
    k.i("v_and_b32 v5, 31, v1")
    k.i("v_lshlrev_b32 v5, 4, v5")
    k.i("v_lshrrev_b32 v6, 5, v1")
    k.i("v_lshl_add_u32 v5, v6, 3, v5")
    k.i("s_lshl_b32 s36, s31, 2")
    k.i(f"s_mul_i32 s36, s36, {112 * 1024}")
    k.i("s_lshl_b32 s37, s33, 11")
    k.i("s_add_u32 s36, s36, s37")
    NL2E = -math.log2(math.e)
    for mt in range(4):
        for qd in range(4):
            for i in range(4):
                g = ACC + 16 * mt + 4 * qd + i
                u = g + 64
                k.i(f"v_mul_f32 v{g}, v{g}, v{RS + mt}")
                k.i(f"v_fma_f32 v{g}, -v{MR + mt}, v{CG + 4 * qd + i}, v{g}")
                k.i(f"v_mul_f32 v{g}, {NL2E!r}, v{g}")
                k.i(f"v_exp_f32 v{g}, v{g}")
                k.i(f"v_mul_f32 v{u}, v{u}, v{RS + mt}")
                k.i(f"v_fma_f32 v{u}, -v{MR + mt}, v{CU + 4 * qd + i}, v{u}")
                k.i(f"v_add_f32 v{g}, 1.0, v{g}")
                k.i(f"v_rcp_f32 v{g}, v{g}")
                k.i(f"v_mul_f32 v{u}, v{u}, v{g}")
            u = ACC + 64 + 16 * mt + 4 * qd
            k.i(f"v_cvt_pk_bf16_f32 v56, v{u}, v{u + 1}")
            k.i(f"v_cvt_pk_bf16_f32 v57, v{u + 2}, v{u + 3}")
            k.i(f"buffer_store_dwordx2 v[56:57], v5, s[56:59], s36 offen offset:{(qd >> 1) * 1024 + (qd & 1) * 512}")
        k.i(f"s_add_u32 s36, s36, {112 * 1024}")
    k.endpgm()
    return kernel_text(k, 240, 64), (name, 224, 256, LDS_K14_TOTAL)


def build_layers():
    out = []
    for layer, sfx in ((1, "a"), (2, "b")):
        out.append(build_k1(f"k1{sfx}_kernel", layer))
        out.append(build_k2(f"k2{sfx}_kernel"))
        out.append(build_k35(f"k3{sfx}_kernel", 3, layer))
        out.append(build_k4(f"k4{sfx}_kernel", layer))
        out.append(build_k35(f"k5{sfx}_kernel", 5, layer))
    return out
```

```python
from common import *

J_WQKV = (0, 336)
J_WO = (336, 98)
J_WG = (434, 392)
J_WU = (826, 392)
J_WD = (1218, 392)
J_CS = (1610, 77)
J_ST = (1687, 64)
PREP_WGS = 1751


def gather_job(k, start, kaoff, nrows_k, ncols_n, dst_off, dst_size, pad):
    KS = nrows_k // 16
    N2 = ncols_n * 2
    k.i(f"s_sub_u32 s20, s2, {start}")
    load_ptr(k, 6, kaoff)
    k.waitcnt(lg=0)
    make_srd(k, 12, 6, 0, nrows_k * ncols_n * 2)
    make_srd(k, 16, 4, dst_off, dst_size)
    wave_id(k, 30, 1)
    k.i("s_lshl_b32 s31, s20, 2")
    k.i("s_add_u32 s31, s31, s30")
    s_div(k, 32, 31, KS, 392 * 4 + 8, 33)
    k.i(f"s_mul_i32 s33, s32, {KS}")
    k.i("s_sub_u32 s33, s31, s33")
    k.i("v_and_b32 v1, 63, v0")
    k.i("v_and_b32 v2, 31, v1")
    k.i("v_lshrrev_b32 v3, 5, v1")
    k.i("s_lshl_b32 s35, s33, 4")
    k.i("v_lshlrev_b32 v5, 3, v3")
    k.i("v_add_u32 v5, s35, v5")
    if pad:
        k.i("s_mul_i32 s36, s32, 28")
    else:
        k.i("s_lshl_b32 s36, s32, 5")
    k.i("v_add_u32 v6, s36, v2")
    k.i(f"s_mov_b32 s37, {N2}")
    k.i("v_mul_lo_u32 v7, v5, s37")
    k.i("v_lshlrev_b32 v6, 1, v6")
    k.i("v_add_u32 v7, v7, v6")
    if pad:
        k.i("v_cmp_gt_u32 vcc, 28, v2")
        k.i("v_mov_b32 v8, 0x7fffff00")
        k.i("v_cndmask_b32 v7, v8, v7, vcc")
    for j in range(8):
        k.i(f"s_mov_b32 s{40 + j}, {j * N2}")
    for j in range(8):
        k.i(f"buffer_load_ushort v{10 + j}, v7, s[12:15], s{40 + j} offen")
    for j in range(4):
        k.i(f"v_lshl_or_b32 v{20 + j}, v{11 + 2 * j}, 16, v{10 + 2 * j}")
    k.i("s_lshl_b32 s37, s31, 10")
    k.i("v_lshlrev_b32 v8, 4, v1")
    k.i("buffer_store_dwordx4 v[20:23], v8, s[16:19], s37 offen")
    k.endpgm()


def csum_job(k):
    k.i(f"s_sub_u32 s20, s2, {J_CS[0]}")
    l_q, l_g, l_go = k.newlabel("csq"), k.newlabel("csg"), k.newlabel("csgo")
    k.i("s_cmp_lt_u32 s20, 21")
    k.i(f"s_cbranch_scc1 {l_q}")
    k.i("s_cmp_lt_u32 s20, 49")
    k.i(f"s_cbranch_scc1 {l_g}")
    k.i("s_sub_u32 s21, s20, 49")
    load_ptr(k, 6, KA_WU)
    k.i(f"s_mov_b32 s22, {WS_CS_U}")
    k.i(f"s_mov_b32 s23, {2 * 1792}")
    k.i("s_mov_b32 s24, 0")
    k.i(f"s_branch {l_go}")
    k.label(l_g)
    k.i("s_sub_u32 s21, s20, 21")
    load_ptr(k, 6, KA_WG)
    k.i(f"s_mov_b32 s22, {WS_CS_G}")
    k.i(f"s_mov_b32 s23, {2 * 1792}")
    k.i("s_mov_b32 s24, 0")
    k.i(f"s_branch {l_go}")
    k.label(l_q)
    k.i("s_mov_b32 s21, s20")
    load_ptr(k, 6, KA_WQKV)
    k.i(f"s_mov_b32 s22, {WS_CS_QKV}")
    k.i(f"s_mov_b32 s23, {2 * 1344}")
    k.i("s_mov_b32 s24, 1")
    k.label(l_go)
    k.waitcnt(lg=0)
    k.i("s_mov_b32 s12, s6")
    k.i("s_mov_b32 s13, s7")
    k.i("s_mul_i32 s14, s23, 448")
    k.i("s_mov_b32 s15, 0x00020000")
    k.i("s_add_u32 s16, s4, s22")
    k.i("s_addc_u32 s17, s5, 0")
    k.i("s_mov_b32 s18, 8192")
    k.i("s_mov_b32 s19, 0x00020000")
    k.i("s_lshl_b32 s25, s21, 7")
    k.i("v_and_b32 v1, 7, v0")
    k.i("v_lshrrev_b32 v2, 3, v0")
    k.i("v_lshlrev_b32 v3, 4, v2")
    k.i("v_mul_lo_u32 v3, v3, s23")
    k.i("v_lshlrev_b32 v4, 4, v1")
    k.i("v_add3_u32 v3, v3, v4, s25")
    for j in range(16):
        k.i(f"buffer_load_dwordx4 v[{32 + 4 * j}:{35 + 4 * j}], v3, s[12:15], 0 offen")
        if j < 15:
            k.i("v_add_u32 v3, s23, v3")
    for c in range(8):
        k.i(f"v_mov_b32 v{16 + c}, 0")
    for j in range(16):
        for d in range(4):
            src = 32 + 4 * j + d
            k.i(f"v_lshlrev_b32 v5, 16, v{src}")
            k.i(f"v_and_b32 v6, 0xffff0000, v{src}")
            k.i(f"v_add_f32 v{16 + 2 * d}, v{16 + 2 * d}, v5")
            k.i(f"v_add_f32 v{17 + 2 * d}, v{17 + 2 * d}, v6")
    k.i("v_lshlrev_b32 v5, 8, v2")
    k.i("v_lshl_add_u32 v5, v1, 5, v5")
    k.i("ds_write_b128 v5, v[16:19]")
    k.i("ds_write_b128 v5, v[20:23] offset:16")
    k.barrier()
    k.i("v_cmp_gt_u32 vcc, 64, v0")
    k.i("s_and_saveexec_b64 s[26:27], vcc")
    l_skip = k.newlabel("csskip")
    k.i(f"s_cbranch_execz {l_skip}")
    k.i("v_lshlrev_b32 v5, 2, v0")
    for kg in range(32):
        k.i(f"ds_read_b32 v{32 + kg}, v5 offset:{kg * 256}")
    k.i("v_mov_b32 v6, 0")
    for kg in range(32):
        k.i(f"v_add_f32 v6, v6, v{32 + kg}")
    k.i("s_lshr_b32 s25, s25, 1")
    k.i("v_add_u32 v7, s25, v0")
    l_np = k.newlabel("csnp")
    k.i("s_cmp_eq_u32 s24, 0")
    k.i(f"s_cbranch_scc1 {l_np}")
    m, s = magic(28, 1400)
    k.i(f"s_mov_b32 s28, {m}")
    k.i("v_mul_hi_u32 v8, v7, s28")
    if s > 32:
        k.i(f"v_lshrrev_b32 v8, {s - 32}, v8")
    k.i("v_lshlrev_b32 v9, 2, v8")
    k.i("v_add_u32 v7, v7, v9")
    k.label(l_np)
    k.i("v_lshlrev_b32 v7, 2, v7")
    k.i("buffer_store_dword v6, v7, s[16:19], 0 offen")
    k.label(l_skip)
    k.i("s_mov_b64 exec, s[26:27]")
    l_end = k.newlabel("csend")
    k.i("s_cmp_lg_u32 s20, 0")
    k.i(f"s_cbranch_scc1 {l_end}")
    k.i("v_subrev_u32 v5, 64, v0")
    k.i("v_cmp_le_u32 vcc, 64, v0")
    k.i("s_and_saveexec_b64 s[26:27], vcc")
    k.i(f"s_cbranch_execz {l_end}")
    k.i("v_lshrrev_b32 v6, 2, v5")
    k.i("v_lshlrev_b32 v6, 5, v6")
    k.i("v_and_b32 v7, 3, v5")
    k.i("v_add3_u32 v6, v6, v7, 28")
    k.i("v_lshlrev_b32 v6, 2, v6")
    k.i("v_mov_b32 v8, 0")
    k.i("buffer_store_dword v8, v6, s[16:19], 0 offen")
    k.label(l_end)
    k.endpgm()


def stats_job(k):
    k.i(f"s_sub_u32 s20, s2, {J_ST[0]}")
    load_ptr(k, 6, KA_X)
    k.waitcnt(lg=0)
    make_srd(k, 12, 6, 0, SZ_X)
    make_srd(k, 16, 4, WS_ST0, SZ_ST)
    k.i("v_lshrrev_b32 v1, 3, v0")
    k.i("s_lshl_b32 s21, s20, 5")
    k.i("v_add_u32 v1, s21, v1")
    k.i("v_and_b32 v2, 7, v0")
    k.i("v_mul_u32_u24 v3, 896, v1")
    k.i("v_lshl_add_u32 v3, v2, 4, v3")
    for i in range(7):
        k.i(f"buffer_load_dwordx4 v[{16 + 4 * i}:{19 + 4 * i}], v3, s[12:15], 0 offen offset:{128 * i}")
    k.i("v_mov_b32 v8, 0")
    k.i("v_mov_b32 v9, 0")
    for i in range(28):
        src = 16 + i
        k.i(f"v_lshlrev_b32 v5, 16, v{src}")
        k.i(f"v_and_b32 v6, 0xffff0000, v{src}")
        k.i("v_add_f32 v8, v8, v5")
        k.i("v_fma_f32 v9, v5, v5, v9")
        k.i("v_add_f32 v8, v8, v6")
        k.i("v_fma_f32 v9, v6, v6, v9")
    for mod in ("quad_perm:[1,0,3,2]", "quad_perm:[2,3,0,1]", "row_half_mirror"):
        k.i(f"v_add_f32_dpp v8, v8, v8 {mod} row_mask:0xf bank_mask:0xf")
        k.i(f"v_add_f32_dpp v9, v9, v9 {mod} row_mask:0xf bank_mask:0xf")
    k.i("v_cmp_eq_u32 vcc, 0, v2")
    k.i("v_cndmask_b32 v10, 0, v8, vcc")
    k.i("v_cndmask_b32 v11, 0, v9, vcc")
    k.i("v_mov_b32 v12, 0")
    k.i("v_mov_b32 v13, 0")
    k.i("v_mul_u32_u24 v3, 112, v1")
    k.i("v_lshl_add_u32 v3, v2, 4, v3")
    k.i("v_cmp_gt_u32 vcc, 7, v2")
    k.i("s_and_saveexec_b64 s[26:27], vcc")
    k.i("buffer_store_dwordx4 v[10:13], v3, s[16:19], 0 offen")
    k.endpgm()


def build_prep():
    k = Kernel("prep_kernel")
    exit_if_ge(k, 2, PREP_WGS)
    load_ptr(k, 4, KA_WS)
    jobs = [
        (J_WO[0], lambda: gather_job(k, J_WQKV[0], KA_WQKV, 448, 1344, WS_WQKV_F, SZ_WQKV_F, True)),
        (J_WG[0], lambda: gather_job(k, J_WO[0], KA_WO, 448, 448, WS_WO_F, SZ_WO_F, False)),
        (J_WU[0], lambda: gather_job(k, J_WG[0], KA_WG, 448, 1792, WS_WG_F, SZ_WG_F, False)),
        (J_WD[0], lambda: gather_job(k, J_WU[0], KA_WU, 448, 1792, WS_WU_F, SZ_WG_F, False)),
        (J_CS[0], lambda: gather_job(k, J_WD[0], KA_WD, 1792, 448, WS_WD_F, SZ_WD_F, False)),
        (J_ST[0], lambda: csum_job(k)),
    ]
    for limit, fn in jobs:
        nxt = k.newlabel("job")
        k.i(f"s_cmp_ge_u32 s2, {limit}")
        k.i(f"s_cbranch_scc1 {nxt}")
        fn()
        k.label(nxt)
    stats_job(k)
    return kernel_text(k, 100, 64), ("prep_kernel", PREP_WGS, 256, 8192)
```

```python
import sys
sys.path.insert(0, "gen")
from common import *
import k_prep

def build(upto=None):
    parts = []
    launches = []
    t, l = k_prep.build_prep(); parts.append(t); launches.append(l)
    try:
        import k_layers
        for t, l in k_layers.build_layers():
            parts.append(t); launches.append(l)
    except ImportError:
        pass
    if upto is not None:
        launches = launches[:upto]
    hdr = open("interleave_layers__mha_block__glu_gated_glu__prompt.s.ref").read().split("; Override launch")[0]
    out = hdr
    for name, grid, block, lds in launches:
        out += f"; @launch kernel={name} grid=({grid},1,1) block=({block},1,1) lds={lds}\n"
    out += '.amdgcn_target "amdgcn-amd-amdhsa--gfx950"\n'
    out += "".join(parts)
    return out

if __name__ == "__main__":
    upto = int(sys.argv[1]) if len(sys.argv) > 1 else None
    s = build(upto)
    open("interleave_layers__mha_block__glu_gated_glu__prompt.s", "w").write(s)
    print("wrote", len(s), "bytes")
```

```python
from common import *
import os

import math, struct
ATT_C = (28 ** -0.5) * math.log2(math.e)


def np_f32_hex(x):
    return hex(struct.unpack("<I", struct.pack("<f", x))[0])


LDS_A_STRIDE = 912
LDS_A_BYTES = 128 * LDS_A_STRIDE
LDS_RSTD = 0
LDS_MR = 512
LDS_A0 = 1024
LDS_K14_TOTAL = LDS_A_BYTES + 1024

assert all(((ci * 9363) >> 19) == ci // 56 for ci in range(7168))


def stage_x_and_stats(k, s_x_srd, s_st_srd, s_row0, vt0):
    k.i("v_lshlrev_b32 v3, 4, v0")
    k.i(f"s_mul_i32 s40, s{s_row0}, 896")
    for half in range(2):
        for i in range(14):
            ii = half * 14 + i
            k.i(f"s_add_u32 s41, s40, {ii * 4096}")
            k.i(f"buffer_load_dwordx4 v[{vt0 + 4 * i}:{vt0 + 4 * i + 3}], v3, s[{s_x_srd}:{s_x_srd + 3}], s41 offen")
        for i in range(14):
            ii = half * 14 + i
            k.i(f"v_add_u32 v4, {ii * 256}, v0")
            k.i("v_mul_u32_u24 v5, 9363, v4")
            k.i("v_lshrrev_b32 v5, 19, v5")
            k.i("v_add_lshl_u32 v4, v4, v5, 4")
            k.i(f"ds_write_b128 v4, v[{vt0 + 4 * i}:{vt0 + 4 * i + 3}] offset:{LDS_A0}")
    k.i("v_cmp_gt_u32 vcc, 128, v0")
    k.i("s_and_saveexec_b64 s[42:43], vcc")
    lab = k.newlabel("st")
    k.i(f"s_cbranch_execz {lab}")
    k.i(f"v_add_u32 v4, s{s_row0}, v0")
    k.i("v_mul_u32_u24 v4, 112, v4")
    for i in range(7):
        k.i(f"buffer_load_dwordx4 v[{vt0 + 4 * i}:{vt0 + 4 * i + 3}], v4, s[{s_st_srd}:{s_st_srd + 3}], 0 offen offset:{16 * i}")
    k.i("v_mov_b32 v5, 0")
    k.i("v_mov_b32 v6, 0")
    for i in range(14):
        k.i(f"v_add_f32 v5, v5, v{vt0 + 2 * i}")
        k.i(f"v_add_f32 v6, v6, v{vt0 + 2 * i + 1}")
    k.i(f"v_mul_f32 v5, {1.0 / 448!r}, v5")
    k.i(f"v_mul_f32 v6, {1.0 / 448!r}, v6")
    k.i("v_fma_f32 v6, -v5, v5, v6")
    k.i("v_max_f32 v6, 0, v6")
    k.i(f"v_add_f32 v6, {EPS!r}, v6")
    k.i("v_rsq_f32 v6, v6")
    k.i("v_mul_f32 v5, v5, v6")
    k.i("v_lshlrev_b32 v4, 2, v0")
    k.i(f"ds_write_b32 v4, v6 offset:{LDS_RSTD}")
    k.i(f"ds_write_b32 v4, v5 offset:{LDS_MR}")
    k.label(lab)
    k.i("s_mov_b64 exec, s[42:43]")
    k.barrier()


def build_k1(name, layer):
    k = Kernel(name)
    exit_if_ge(k, 2, 192)
    load_ptr(k, 4, KA_WS)
    if layer == 1:
        load_ptr(k, 6, KA_X)
    k.waitcnt(lg=0)
    if layer == 1:
        make_srd(k, 12, 6, 0, SZ_X)
    else:
        make_srd(k, 12, 4, WS_X2, SZ_X)
    make_srd(k, 16, 4, WS_WQKV_F, SZ_WQKV_F)
    make_srd(k, 20, 4, WS_ST0 if layer == 1 else WS_ST2, SZ_ST)
    make_srd(k, 24, 4, WS_CS_QKV, 1536 * 4)
    wave_id(k, 32, 1)
    k.i("s_lshr_b32 s30, s2, 4")
    k.i("s_and_b32 s31, s2, 15")
    k.i("s_lshl_b32 s34, s31, 7")
    k.i("s_lshl_b32 s33, s30, 2")
    k.i("s_add_u32 s33, s33, s32")
    k.i("s_mul_i32 s35, s33, 28672")
    k.i("v_and_b32 v1, 63, v0")
    k.i("v_lshlrev_b32 v2, 4, v1")
    VB = 16
    for ks in range(28):
        if ks % 4 == 0:
            k.i(f"s_add_u32 s36, s35, {ks * 1024}")
        k.i(f"buffer_load_dwordx4 v[{VB + 4 * ks}:{VB + 4 * ks + 3}], v2, s[16:19], s36 offen offset:{(ks % 4) * 1024}")
    stage_x_and_stats(k, 12, 20, 34, 128)
    ACC = 128
    AF = [192, 208]
    k.i("v_and_b32 v3, 31, v1")
    k.i(f"v_mul_u32_u24 v3, {LDS_A_STRIDE}, v3")
    k.i("v_lshrrev_b32 v4, 5, v1")
    k.i("v_lshl_add_u32 v8, v4, 4, v3")
    k.i(f"v_add_u32 v9, {2 * 32 * LDS_A_STRIDE}, v8")

    def aload(ks, buf):
        for mt in range(4):
            base = 8 if mt < 2 else 9
            off = LDS_A0 + (mt % 2) * 32 * LDS_A_STRIDE + ks * 32
            k.i(f"ds_read_b128 v[{AF[buf] + 4 * mt}:{AF[buf] + 4 * mt + 3}], v{base} offset:{off}")

    def mainloop(vpath):
        aload(0, 0)
        for ks in range(28):
            if ks + 1 < 28:
                aload(ks + 1, (ks + 1) % 2)
            for mt in range(4):
                a = f"v[{AF[ks % 2] + 4 * mt}:{AF[ks % 2] + 4 * mt + 3}]"
                b = f"v[{VB + 4 * ks}:{VB + 4 * ks + 3}]"
                acc = f"v[{ACC + 16 * mt}:{ACC + 16 * mt + 15}]"
                c = "0" if ks == 0 else acc
                if vpath:
                    k.i(f"v_mfma_f32_32x32x16_bf16 {acc}, {a}, {b}, {c}")
                else:
                    k.i(f"v_mfma_f32_32x32x16_bf16 {acc}, {b}, {a}, {c}")

    l_v = k.newlabel("vpath")
    k.i("s_cmp_ge_u32 s30, 8")
    k.i(f"s_cbranch_scc1 {l_v}")
    mainloop(False)
    k.i("s_cmp_lt_u32 s30, 4")
    k.i(f"s_mov_b32 s36, {WS_K}")
    k.i(f"s_cselect_b32 s36, {WS_Q}, s36")
    k.i("s_add_u32 s28, s4, s36")
    k.i("s_addc_u32 s29, s5, 0")
    k.i(f"s_mov_b32 s30, {SZ_QK}")
    k.i("s_mov_b32 s31, 0x00020000")
    k.i("s_and_b32 s36, s33, 15")
    k.i("s_lshl_b32 s36, s36, 17")
    k.i("v_lshrrev_b32 v4, 5, v1")
    k.i("v_lshlrev_b32 v4, 4, v4")
    k.i("s_lshl_b32 s37, s33, 7")
    CS = 16
    for qd in range(4):
        k.i(f"buffer_load_dwordx4 v[{CS + 4 * qd}:{CS + 4 * qd + 3}], v4, s[24:27], s37 offen offset:{32 * qd}")
    k.i("v_and_b32 v5, 31, v1")
    k.i("v_lshlrev_b32 v5, 2, v5")
    RS, MR = 32, 36
    for mt in range(4):
        k.i(f"ds_read_b32 v{RS + mt}, v5 offset:{LDS_RSTD + 128 * mt}")
        k.i(f"ds_read_b32 v{MR + mt}, v5 offset:{LDS_MR + 128 * mt}")
    k.i("s_cmp_lt_u32 s33, 16")
    k.i(f"s_cselect_b32 s38, {np_f32_hex(ATT_C)}, 1.0")
    for mt in range(4):
        k.i(f"v_mul_f32 v{RS + mt}, s38, v{RS + mt}")
        k.i(f"v_mul_f32 v{MR + mt}, s38, v{MR + mt}")
    k.i("v_and_b32 v5, 31, v1")
    k.i("v_add_u32 v5, s34, v5")
    k.i("v_lshlrev_b32 v5, 6, v5")
    k.i("v_lshrrev_b32 v6, 5, v1")
    k.i("v_lshl_add_u32 v5, v6, 3, v5")
    for mt in range(4):
        for qd in range(4):
            for i in range(4):
                a = ACC + 16 * mt + 4 * qd + i
                k.i(f"v_mul_f32 v{a}, v{a}, v{RS + mt}")
                k.i(f"v_fma_f32 v{a}, -v{MR + mt}, v{CS + 4 * qd + i}, v{a}")
            a = ACC + 16 * mt + 4 * qd
            k.i(f"v_cvt_pk_bf16_f32 v40, v{a}, v{a + 1}")
            k.i(f"v_cvt_pk_bf16_f32 v41, v{a + 2}, v{a + 3}")
            k.i(f"buffer_store_dwordx2 v[40:41], v5, s[28:31], s36 offen offset:{qd * 16}")
        k.i("s_add_u32 s36, s36, 2048")
    k.endpgm()
    k.label(l_v)
    mainloop(True)
    make_srd(k, 28, 4, WS_VT, SZ_VT)
    k.i("s_sub_u32 s36, s33, 32")
    k.i("s_lshl_b32 s36, s36, 17")
    k.i("s_lshl_b32 s37, s34, 6")
    k.i("s_add_u32 s36, s36, s37")
    k.i("v_and_b32 v4, 31, v1")
    k.i("v_lshlrev_b32 v4, 2, v4")
    k.i("s_lshl_b32 s37, s33, 7")
    k.i("buffer_load_dword v16, v4, s[24:27], s37 offen")
    k.i("v_and_b32 v4, 31, v1")
    k.i("v_cmp_eq_u32 vcc, 28, v4")
    k.i("v_mov_b32 v17, 0x3f803f80")
    k.i("v_lshrrev_b32 v5, 5, v1")
    k.i("v_lshlrev_b32 v5, 4, v5")
    for mt in range(4):
        for b in range(2):
            for jh in range(2):
                qd = 2 * b + jh
                off = (mt * 32 + qd * 8) * 4
                k.i(f"ds_read_b128 v[{20 + 8 * jh}:{23 + 8 * jh}], v5 offset:{LDS_RSTD + off}")
                k.i(f"ds_read_b128 v[{24 + 8 * jh}:{27 + 8 * jh}], v5 offset:{LDS_MR + off}")
                for i in range(4):
                    a = ACC + 16 * mt + 4 * qd + i
                    k.i(f"v_mul_f32 v{a}, v{a}, v{20 + 8 * jh + i}")
                    k.i(f"v_fma_f32 v{a}, -v{24 + 8 * jh + i}, v16, v{a}")
                a = ACC + 16 * mt + 4 * qd
                k.i(f"v_cvt_pk_bf16_f32 v{40 + 2 * jh}, v{a}, v{a + 1}")
                k.i(f"v_cvt_pk_bf16_f32 v{41 + 2 * jh}, v{a + 2}, v{a + 3}")
            for r in range(4):
                k.i(f"v_cndmask_b32 v{40 + r}, v{40 + r}, v17, vcc")
            kb = mt * 2 + b
            k.i(f"buffer_store_dwordx4 v[40:43], v2, s[28:31], s36 offen offset:{(kb % 4) * 1024}")
            if kb == 3:
                k.i("s_add_u32 s36, s36, 4096")
    k.endpgm()
    return kernel_text(k, 256, 64), (name, 192, 256, LDS_K14_TOTAL)


def build_layers():
    out = []
    out.append(build_k1("k1a_kernel", 1))
    return out


import math
ATT_C = (28 ** -0.5) * math.log2(math.e)
LDS_ATT = 1024 + 32768


def build_k2(name):
    k = Kernel(name)
    exit_if_ge(k, 2, 512)
    load_ptr(k, 4, KA_WS)
    k.waitcnt(lg=0)
    make_srd(k, 12, 4, WS_Q, SZ_QK)
    make_srd(k, 16, 4, WS_K, SZ_QK)
    make_srd(k, 20, 4, WS_VT, SZ_VT)
    make_srd(k, 24, 4, WS_O_F, SZ_O_F)
    wave_id(k, 32, 1)
    k.i("s_and_b32 s30, s2, 7")
    k.i("s_lshl_b32 s30, s30, 1")
    k.i("s_bfe_u32 s31, s2, 0x10003")
    k.i("s_add_u32 s30, s30, s31")
    k.i("s_lshr_b32 s31, s2, 4")
    k.i("s_lshl_b32 s33, s30, 17")
    k.i("v_and_b32 v1, 63, v0")
    k.i("v_and_b32 v2, 31, v1")
    k.i("v_lshlrev_b32 v2, 6, v2")
    k.i("v_lshrrev_b32 v3, 5, v1")
    k.i("v_lshl_add_u32 v2, v3, 4, v2")
    k.i("v_lshlrev_b32 v3, 4, v1")
    QF, OA, PP = 16, 32, 96
    SAB = [64, 160]
    KF = [112, 120, 128, 136]
    VF = [224, 232, 240, 248]
    MC = 144
    k.i("s_lshl_b32 s34, s31, 12")
    k.i("s_add_u32 s34, s34, s33")
    for qt in range(2):
        for kk in range(2):
            r = QF + qt * 8 + kk * 4
            k.i(f"buffer_load_dwordx4 v[{r}:{r + 3}], v2, s[12:15], s34 offen offset:{qt * 2048 + kk * 32}")
    k.i("s_lshl_b32 s35, s32, 15")
    k.i("s_add_u32 s35, s35, s33")
    k.i("s_lshl_b32 s36, s32, 15")
    k.i("s_add_u32 s36, s36, s33")
    k.i(f"s_mov_b32 s40, {ATT_C!r}")

    CI = 192

    def kload(buf):
        for kk in range(2):
            r = KF[buf] + kk * 4
            k.i(f"buffer_load_dwordx4 v[{r}:{r + 3}], v2, s[16:19], s35 offen offset:{kk * 32}")
        k.i("s_add_u32 s35, s35, 2048")

    def vload(buf):
        for b in range(2):
            r = VF[buf] + b * 4
            k.i(f"buffer_load_dwordx4 v[{r}:{r + 3}], v3, s[20:23], s36 offen offset:{b * 1024}")
        k.i("s_add_u32 s36, s36, 2048")

    def qk(kbuf, sbuf, cinit):
        for kk in range(2):
            for qt in range(2):
                s = SAB[sbuf] + 16 * qt
                c = (f"v[{CI + 16 * qt}:{CI + 16 * qt + 15}]" if cinit else "0") if kk == 0 else f"v[{s}:{s + 15}]"
                k.i(f"v_mfma_f32_32x32x16_bf16 v[{s}:{s + 15}], v[{KF[kbuf] + 4 * kk}:{KF[kbuf] + 4 * kk + 3}], "
                    f"v[{QF + 8 * qt + 4 * kk}:{QF + 8 * qt + 4 * kk + 3}], {c}")

    k.i("s_mov_b32 s38, s35")
    k.i(f"v_mov_b32 v{MC}, -1e30")
    k.i(f"v_mov_b32 v{MC + 1}, -1e30")
    KB = [112 + 8 * i for i in range(4)] + [224 + 8 * i for i in range(4)] + [192 + 8 * i for i in range(4)] + \
         [32 + 8 * i for i in range(4)]
    for j in range(16):
        for kk in range(2):
            r = KB[j] + 4 * kk
            k.i(f"buffer_load_dwordx4 v[{r}:{r + 3}], v2, s[16:19], s35 offen offset:{kk * 32}")
        k.i("s_add_u32 s35, s35, 2048")

    def qk1(j):
        for kk in range(2):
            for qt in range(2):
                s = SAB[j % 2] + 16 * qt
                c = "0" if kk == 0 else f"v[{s}:{s + 15}]"
                k.i(f"v_mfma_f32_32x32x16_bf16 v[{s}:{s + 15}], v[{KB[j] + 4 * kk}:{KB[j] + 4 * kk + 3}], "
                    f"v[{QF + 8 * qt + 4 * kk}:{QF + 8 * qt + 4 * kk + 3}], {c}")

    def qk1l(j):
        out = []
        for kk in range(2):
            for qt in range(2):
                s = SAB[j % 2] + 16 * qt
                c = "0" if kk == 0 else f"v[{s}:{s + 15}]"
                out.append(f"v_mfma_f32_32x32x16_bf16 v[{s}:{s + 15}], v[{KB[j] + 4 * kk}:{KB[j] + 4 * kk + 3}], "
                           f"v[{QF + 8 * qt + 4 * kk}:{QF + 8 * qt + 4 * kk + 3}], {c}")
        return out

    qk1(0)
    for j in range(16):
        mf = qk1l(j + 1) if j + 1 < 16 else []
        n = 0
        for qt in range(2):
            s = SAB[j % 2] + 16 * qt
            for jj in range(0, 16, 2):
                if n % 4 == 0 and mf:
                    k.i(mf.pop(0))
                n += 1
                k.i(f"v_max3_f32 v{MC + qt}, v{MC + qt}, v{s + jj}, v{s + jj + 1}")
    for r in range(32):
        k.i(f"v_mov_b32 v{OA + r}, 0")
    k.i("s_mov_b32 s35, s38")
    for j in range(3):
        kload(j)
        vload(j)
    kload(3)
    for qt in range(2):
        k.i(f"v_mov_b32 v146, v{MC + qt}")
        k.i(f"v_permlane32_swap_b32 v{MC + qt}, v146")
        k.i(f"v_max_f32 v{MC + qt}, v{MC + qt}, v146")
        for r in range(16):
            k.i(f"v_sub_f32 v{CI + 16 * qt + r}, 0, v{MC + qt}")
    qk(0, 0, True)
    k.i("s_mov_b32 s37, 0")
    loop = k.newlabel("loop")
    k.flush_hazards()
    k.label(loop)
    sig0 = k.sig()
    for j in range(4):
        vload((j + 3) % 4)
        mf = []
        kb, sb = (j + 1) % 4, (j + 1) % 2
        for kk in range(2):
            for qt in range(2):
                s = SAB[sb] + 16 * qt
                c = f"v[{CI + 16 * qt}:{CI + 16 * qt + 15}]" if kk == 0 else f"v[{s}:{s + 15}]"
                mf.append(f"v_mfma_f32_32x32x16_bf16 v[{s}:{s + 15}], v[{KF[kb] + 4 * kk}:{KF[kb] + 4 * kk + 3}], "
                          f"v[{QF + 8 * qt + 4 * kk}:{QF + 8 * qt + 4 * kk + 3}], {c}")
        for qt in range(2):
            s = SAB[j % 2] + 16 * qt
            for r in range(16):
                if r % 4 == 0 and mf:
                    k.i(mf.pop(0))
                k.i(f"v_exp_f32 v{s + r}, v{s + r}")
            if qt == 0:
                kload(j)
            for r in range(8):
                k.i(f"v_cvt_pk_bf16_f32 v{PP + 8 * qt + r}, v{s + 2 * r}, v{s + 2 * r + 1}")
            o = OA + 16 * qt
            for b in range(2):
                mf.append(f"v_mfma_f32_32x32x16_bf16 v[{o}:{o + 15}], v[{VF[j] + 4 * b}:{VF[j] + 4 * b + 3}], "
                          f"v[{PP + 8 * qt + 4 * b}:{PP + 8 * qt + 4 * b + 3}], v[{o}:{o + 15}]")
        for m in mf:
            k.i(m)
    k.i("s_add_u32 s37, s37, 1")
    k.i(f"s_cmp_lt_u32 s37, {os.environ.get('K2_IT2', 4)}")
    k.flush_hazards()
    assert k.sig() == sig0, (k.sig(), sig0)
    k.i(f"s_cbranch_scc1 {loop}")
    k.wait_all()
    k.i("v_and_b32 v4, 31, v1")
    k.i("v_lshlrev_b32 v4, 2, v4")
    k.i("s_lshl_b32 s38, s32, 8")
    k.i("v_add_u32 v5, s38, v4")
    k.i(f"ds_write_b32 v5, v{MC}")
    k.i(f"ds_write_b32 v5, v{MC + 1} offset:128")
    k.barrier()
    for w in range(4):
        k.i(f"ds_read_b32 v{146 + w}, v4 offset:{w * 256}")
        k.i(f"ds_read_b32 v{150 + w}, v4 offset:{w * 256 + 128}")
    k.i("v_max3_f32 v146, v146, v147, v148")
    k.i("v_max_f32 v146, v146, v149")
    k.i("v_max3_f32 v150, v150, v151, v152")
    k.i("v_max_f32 v150, v150, v153")
    k.i(f"v_sub_f32 v146, v{MC}, v146")
    k.i(f"v_sub_f32 v150, v{MC + 1}, v150")
    k.i("v_exp_f32 v146, v146")
    k.i("v_exp_f32 v150, v150")
    for r in range(16):
        k.i(f"v_mul_f32 v{OA + r}, v{OA + r}, v146")
        k.i(f"v_mul_f32 v{OA + 16 + r}, v{OA + 16 + r}, v150")
    k.i("s_lshl_b32 s38, s32, 13")
    k.i("v_add_u32 v5, s38, v3")
    for qt in range(2):
        for qd in range(4):
            r = OA + 16 * qt + 4 * qd
            k.i(f"ds_write_b128 v5, v[{r}:{r + 3}] offset:{1024 + (qt * 4 + qd) * 1024}")
    k.barrier()
    k.i("s_and_b32 s38, s32, 1")
    k.i("s_lshr_b32 s39, s32, 1")
    k.i("s_lshl_b32 s41, s38, 12")
    k.i("s_lshl_b32 s42, s39, 11")
    k.i("s_add_u32 s41, s41, s42")
    k.i("v_add_u32 v5, s41, v3")
    for w in range(4):
        for j in range(2):
            r = 64 + 8 * w + 4 * j
            k.i(f"ds_read_b128 v[{r}:{r + 3}], v5 offset:{1024 + w * 8192 + j * 1024}")
    k.i("v_and_b32 v6, 31, v1")
    k.i("v_lshlrev_b32 v6, 4, v6")
    k.i("s_lshl_b32 s41, s38, 12")
    k.i("v_add_u32 v6, s41, v6")
    for w in range(4):
        k.i(f"ds_read_b32 v{100 + w}, v6 offset:{1024 + w * 8192 + 3 * 1024 + 512}")
    for j in range(8):
        k.i(f"v_add_f32 v{64 + j}, v{64 + j}, v{72 + j}")
        k.i(f"v_add_f32 v{80 + j}, v{80 + j}, v{88 + j}")
        k.i(f"v_add_f32 v{64 + j}, v{64 + j}, v{80 + j}")
    k.i("v_add_f32 v100, v100, v101")
    k.i("v_add_f32 v102, v102, v103")
    k.i("v_add_f32 v100, v100, v102")
    k.i("v_rcp_f32 v100, v100")
    for j in range(8):
        k.i(f"v_mul_f32 v{64 + j}, v{64 + j}, v100")
    k.i("s_lshl_b32 s41, s31, 1")
    k.i("s_add_u32 s41, s41, s38")
    k.i("s_mul_i32 s41, s41, 28672")
    k.i("s_mul_i32 s42, s30, 28")
    k.i("s_lshl_b32 s43, s39, 4")
    k.i("s_add_u32 s42, s42, s43")
    k.i("v_lshrrev_b32 v7, 5, v1")
    k.i("v_lshlrev_b32 v7, 2, v7")
    k.i("v_and_b32 v8, 31, v1")
    for j in range(2):
        k.i(f"v_add_u32 v9, {8 * j}, v7")
        k.i("v_add_u32 v9, s42, v9")
        k.i("v_lshrrev_b32 v10, 4, v9")
        k.i("v_lshlrev_b32 v10, 10, v10")
        k.i("v_bfe_u32 v11, v9, 3, 1")
        k.i("v_lshl_add_u32 v11, v11, 5, v8")
        k.i("v_lshl_add_u32 v10, v11, 4, v10")
        k.i("v_and_b32 v11, 7, v9")
        k.i("v_lshl_add_u32 v10, v11, 1, v10")
        k.i(f"v_cvt_pk_bf16_f32 v12, v{64 + 4 * j}, v{65 + 4 * j}")
        k.i(f"v_cvt_pk_bf16_f32 v13, v{66 + 4 * j}, v{67 + 4 * j}")
        k.i("s_mul_i32 s43, s30, 28")
        k.i("v_subrev_u32 v14, s43, v9")
        k.i("v_cmp_gt_u32 vcc, 28, v14")
        k.i("s_and_saveexec_b64 s[44:45], vcc")
        k.i("buffer_store_dwordx2 v[12:13], v10, s[24:27], s41 offen")
        k.i("s_mov_b64 exec, s[44:45]")
    k.endpgm()
    return kernel_text(k, 256, 64), (name, 512, 256, LDS_ATT)


def build_k35(name, kind, layer):
    KS = 28 if kind == 3 else 112
    per = KS // 4
    k = Kernel(name)
    exit_if_ge(k, 2, 224)
    load_ptr(k, 4, KA_WS)
    if kind == 3 and layer == 1:
        load_ptr(k, 6, KA_X)
    if kind == 5 and layer == 2:
        load_ptr(k, 8, KA_OUT)
    k.waitcnt(lg=0)
    if kind == 3:
        make_srd(k, 12, 4, WS_O_F, SZ_O_F)
        make_srd(k, 16, 4, WS_WO_F, SZ_WO_F)
        if layer == 1:
            make_srd(k, 20, 6, 0, SZ_X)
        else:
            make_srd(k, 20, 4, WS_X2, SZ_X)
        make_srd(k, 24, 4, WS_X1 if layer == 1 else WS_X3, SZ_X)
        make_srd(k, 28, 4, WS_ST1 if layer == 1 else WS_ST3, SZ_ST)
        stats = True
    else:
        make_srd(k, 12, 4, WS_H_F, SZ_H_F)
        make_srd(k, 16, 4, WS_WD_F, SZ_WD_F)
        make_srd(k, 20, 4, WS_X1 if layer == 1 else WS_X3, SZ_X)
        if layer == 1:
            make_srd(k, 24, 4, WS_X2, SZ_X)
            make_srd(k, 28, 4, WS_ST2, SZ_ST)
        else:
            make_srd(k, 24, 8, 0, SZ_X)
        stats = layer == 1
    wave_id(k, 32, 1)
    k.i("s_and_b32 s33, s2, 7")
    k.i("s_lshl_b32 s33, s33, 2")
    k.i("s_bfe_u32 s34, s2, 0x20003")
    k.i("s_add_u32 s33, s33, s34")
    k.i("s_lshr_b32 s34, s2, 5")
    k.i("v_and_b32 v1, 63, v0")
    k.i("v_lshlrev_b32 v2, 4, v1")
    k.i("s_lshr_b32 s35, s32, 1")
    k.i("s_and_b32 s36, s32, 1")
    k.i("s_lshl_b32 s37, s33, 6")
    k.i("s_lshl_b32 s38, s35, 5")
    k.i("s_add_u32 s37, s37, s38")
    k.i("v_and_b32 v3, 31, v1")
    k.i("v_add_u32 v3, s37, v3")
    k.i("v_mul_u32_u24 v4, 896, v3")
    k.i("v_lshrrev_b32 v5, 5, v1")
    k.i("v_lshl_add_u32 v4, v5, 3, v4")
    k.i("s_lshl_b32 s38, s34, 7")
    k.i("s_lshl_b32 s39, s36, 6")
    k.i("s_add_u32 s38, s38, s39")
    RES = 8
    for qd in range(4):
        k.i(f"buffer_load_dwordx2 v[{RES + 2 * qd}:{RES + 2 * qd + 1}], v4, s[20:23], s38 offen offset:{qd * 16}")
    k.i(f"s_mul_i32 s40, s32, {per * 1024}")
    k.i(f"s_mul_i32 s41, s33, {2 * KS * 1024}")
    k.i("s_add_u32 s41, s41, s40")
    k.i(f"s_add_u32 s42, s41, {KS * 1024}")
    k.i(f"s_mul_i32 s43, s34, {2 * KS * 1024}")
    k.i("s_add_u32 s43, s43, s40")
    k.i(f"s_add_u32 s44, s43, {KS * 1024}")
    ACC = 16
    BUF = [80, 144]
    chunks = []
    i = 0
    while i < per:
        n = min(4, per - i)
        if per - i == 5:
            n = 3
        chunks.append(n)
        i += n

    def loadc(ci):
        base = BUF[ci % 2]
        for j in range(chunks[ci]):
            for t, sreg_ in enumerate((41, 42, 43, 44)):
                srd = 12 if t < 2 else 16
                r = base + 16 * j + 4 * t
                k.i(f"buffer_load_dwordx4 v[{r}:{r + 3}], v2, s[{srd}:{srd + 3}], s{sreg_} offen offset:{j * 1024}")
        for sreg_ in (41, 42, 43, 44):
            k.i(f"s_add_u32 s{sreg_}, s{sreg_}, {chunks[ci] * 1024}")

    loadc(0)
    first = True
    for ci in range(len(chunks)):
        if ci + 1 < len(chunks):
            loadc(ci + 1)
        base = BUF[ci % 2]
        for j in range(chunks[ci]):
            for mt in range(2):
                for nt in range(2):
                    acc = ACC + 16 * (mt * 2 + nt)
                    a = base + 16 * j + 4 * mt
                    b = base + 16 * j + 8 + 4 * nt
                    c = "0" if first else f"v[{acc}:{acc + 15}]"
                    k.i(f"v_mfma_f32_32x32x16_bf16 v[{acc}:{acc + 15}], v[{b}:{b + 3}], v[{a}:{a + 3}], {c}")
            first = False
    k.i("s_lshl_b32 s40, s32, 14")
    k.i("v_add_u32 v5, s40, v2")
    for t in range(4):
        for qd in range(4):
            r = ACC + 16 * t + 4 * qd
            k.i(f"ds_write_b128 v5, v[{r}:{r + 3}] offset:{t * 4096 + qd * 1024}")
    k.barrier()
    k.i("s_lshl_b32 s40, s32, 12")
    k.i("v_add_u32 v5, s40, v2")
    P = 80
    for src in range(4):
        for qd in range(4):
            r = P + 16 * src + 4 * qd
            k.i(f"ds_read_b128 v[{r}:{r + 3}], v5 offset:{src * 16384 + qd * 1024}")
    for r in range(16):
        k.i(f"v_add_f32 v{P + r}, v{P + r}, v{P + 16 + r}")
        k.i(f"v_add_f32 v{P + 32 + r}, v{P + 32 + r}, v{P + 48 + r}")
        k.i(f"v_add_f32 v{P + r}, v{P + r}, v{P + 32 + r}")
    if stats:
        k.i("v_mov_b32 v6, 0")
        k.i("v_mov_b32 v7, 0")
    k.i("v_mov_b32 v20, 0xffff0000")
    for qd in range(4):
        for h in range(2):
            rr = RES + 2 * qd + h
            k.i(f"v_lshlrev_b32 v16, 16, v{rr}")
            k.i(f"v_and_b32 v17, v20, v{rr}")
            k.i(f"v_add_f32 v{P + 4 * qd + 2 * h}, v{P + 4 * qd + 2 * h}, v16")
            k.i(f"v_add_f32 v{P + 4 * qd + 2 * h + 1}, v{P + 4 * qd + 2 * h + 1}, v17")
            k.i(f"v_cvt_pk_bf16_f32 v{18 + h}, v{P + 4 * qd + 2 * h}, v{P + 4 * qd + 2 * h + 1}")
            if stats:
                k.i(f"v_lshlrev_b32 v16, 16, v{18 + h}")
                k.i(f"v_and_b32 v17, v20, v{18 + h}")
                k.i("v_add_f32 v6, v6, v16")
                k.i("v_fma_f32 v7, v16, v16, v7")
                k.i("v_add_f32 v6, v6, v17")
                k.i("v_fma_f32 v7, v17, v17, v7")
        k.i(f"buffer_store_dwordx2 v[18:19], v4, s[24:27], s38 offen offset:{qd * 16}")
    if stats:
        k.i("v_mov_b32 v16, v6")
        k.i("v_mov_b32 v17, v7")
        k.i("v_permlane32_swap_b32 v6, v16")
        k.i("v_permlane32_swap_b32 v7, v17")
        k.i("v_add_f32 v6, v6, v16")
        k.i("v_add_f32 v7, v7, v17")
        k.i("v_mul_u32_u24 v5, 112, v3")
        k.i("s_lshl_b32 s40, s34, 4")
        k.i("s_lshl_b32 s41, s36, 3")
        k.i("s_add_u32 s40, s40, s41")
        k.i("v_cmp_gt_u32 vcc, 32, v1")
        k.i("s_and_saveexec_b64 s[44:45], vcc")
        k.i("buffer_store_dwordx2 v[6:7], v5, s[28:31], s40 offen")
    k.endpgm()
    return kernel_text(k, 208, 64), (name, 224, 256, 65536)


def build_k4(name, layer):
    k = Kernel(name)
    exit_if_ge(k, 2, 224)
    load_ptr(k, 4, KA_WS)
    k.waitcnt(lg=0)
    make_srd(k, 12, 4, WS_X1 if layer == 1 else WS_X3, SZ_X)
    make_srd(k, 16, 4, WS_WG_F, SZ_WG_F)
    make_srd(k, 20, 4, WS_ST1 if layer == 1 else WS_ST3, SZ_ST)
    make_srd(k, 24, 4, WS_CS_G, 1792 * 4)
    make_srd(k, 56, 4, WS_H_F, SZ_H_F)
    make_srd(k, 48, 4, WS_WU_F, SZ_WG_F)
    make_srd(k, 52, 4, WS_CS_U, 1792 * 4)
    wave_id(k, 32, 1)
    k.i("s_lshr_b32 s30, s2, 4")
    k.i("s_and_b32 s31, s2, 15")
    k.i("s_lshl_b32 s34, s31, 7")
    k.i("s_lshl_b32 s33, s30, 2")
    k.i("s_add_u32 s33, s33, s32")
    k.i("s_mul_i32 s35, s33, 28672")
    k.i("v_and_b32 v1, 63, v0")
    k.i("v_lshlrev_b32 v2, 4, v1")
    BB = [16, 48]
    AF = [80, 96]
    ACC = 112

    def bload(c):
        base = BB[c % 2]
        for j in range(4):
            k.i(f"buffer_load_dwordx4 v[{base + 8 * j}:{base + 8 * j + 3}], v2, s[16:19], s35 offen offset:{j * 1024}")
            k.i(f"buffer_load_dwordx4 v[{base + 8 * j + 4}:{base + 8 * j + 7}], v2, s[48:51], s35 offen offset:{j * 1024}")
        k.i("s_add_u32 s35, s35, 4096")

    bload(0)
    stage_x_and_stats(k, 12, 20, 34, ACC)
    k.i("v_and_b32 v3, 31, v1")
    k.i(f"v_mul_u32_u24 v3, {LDS_A_STRIDE}, v3")
    k.i("v_lshrrev_b32 v4, 5, v1")
    k.i("v_lshl_add_u32 v8, v4, 4, v3")
    k.i(f"v_add_u32 v9, {2 * 32 * LDS_A_STRIDE}, v8")

    def aload(ks, buf):
        for mt in range(4):
            base = 8 if mt < 2 else 9
            off = LDS_A0 + (mt % 2) * 32 * LDS_A_STRIDE + ks * 32
            k.i(f"ds_read_b128 v[{AF[buf] + 4 * mt}:{AF[buf] + 4 * mt + 3}], v{base} offset:{off}")

    aload(0, 0)
    for ks in range(28):
        c, j = ks // 4, ks % 4
        if j == 0 and c + 1 < 7:
            bload(c + 1)
        if ks + 1 < 28:
            aload(ks + 1, (ks + 1) % 2)
        for mt in range(4):
            a = f"v[{AF[ks % 2] + 4 * mt}:{AF[ks % 2] + 4 * mt + 3}]"
            for gu in range(2):
                b0 = BB[c % 2] + 8 * j + 4 * gu
                acc = ACC + 64 * gu + 16 * mt
                cc = "0" if ks == 0 else f"v[{acc}:{acc + 15}]"
                k.i(f"v_mfma_f32_32x32x16_bf16 v[{acc}:{acc + 15}], v[{b0}:{b0 + 3}], {a}, {cc}")
    k.i("v_lshrrev_b32 v4, 5, v1")
    k.i("v_lshlrev_b32 v4, 4, v4")
    k.i("s_lshl_b32 s37, s33, 7")
    CG, CU = 16, 32
    for qd in range(4):
        k.i(f"buffer_load_dwordx4 v[{CG + 4 * qd}:{CG + 4 * qd + 3}], v4, s[24:27], s37 offen offset:{32 * qd}")
        k.i(f"buffer_load_dwordx4 v[{CU + 4 * qd}:{CU + 4 * qd + 3}], v4, s[52:55], s37 offen offset:{32 * qd}")
    k.i("v_and_b32 v5, 31, v1")
    k.i("v_lshlrev_b32 v5, 2, v5")
    RS, MR = 48, 52
    for mt in range(4):
        k.i(f"ds_read_b32 v{RS + mt}, v5 offset:{LDS_RSTD + 128 * mt}")
        k.i(f"ds_read_b32 v{MR + mt}, v5 offset:{LDS_MR + 128 * mt}")
    k.i("v_and_b32 v5, 31, v1")
    k.i("v_lshlrev_b32 v5, 4, v5")
    k.i("v_lshrrev_b32 v6, 5, v1")
    k.i("v_lshl_add_u32 v5, v6, 3, v5")
    k.i("s_lshl_b32 s36, s31, 2")
    k.i(f"s_mul_i32 s36, s36, {112 * 1024}")
    k.i("s_lshl_b32 s37, s33, 11")
    k.i("s_add_u32 s36, s36, s37")
    NL2E = -math.log2(math.e)
    for mt in range(4):
        for qd in range(4):
            for i in range(4):
                g = ACC + 16 * mt + 4 * qd + i
                u = g + 64
                k.i(f"v_mul_f32 v{g}, v{g}, v{RS + mt}")
                k.i(f"v_fma_f32 v{g}, -v{MR + mt}, v{CG + 4 * qd + i}, v{g}")
                k.i(f"v_mul_f32 v{g}, {NL2E!r}, v{g}")
                k.i(f"v_exp_f32 v{g}, v{g}")
                k.i(f"v_mul_f32 v{u}, v{u}, v{RS + mt}")
                k.i(f"v_fma_f32 v{u}, -v{MR + mt}, v{CU + 4 * qd + i}, v{u}")
                k.i(f"v_add_f32 v{g}, 1.0, v{g}")
                k.i(f"v_rcp_f32 v{g}, v{g}")
                k.i(f"v_mul_f32 v{u}, v{u}, v{g}")
            u = ACC + 64 + 16 * mt + 4 * qd
            k.i(f"v_cvt_pk_bf16_f32 v56, v{u}, v{u + 1}")
            k.i(f"v_cvt_pk_bf16_f32 v57, v{u + 2}, v{u + 3}")
            k.i(f"buffer_store_dwordx2 v[56:57], v5, s[56:59], s36 offen offset:{(qd >> 1) * 1024 + (qd & 1) * 512}")
        k.i(f"s_add_u32 s36, s36, {112 * 1024}")
    k.endpgm()
    return kernel_text(k, 240, 64), (name, 224, 256, LDS_K14_TOTAL)


def build_layers():
    out = []
    for layer, sfx in ((1, "a"), (2, "b")):
        out.append(build_k1(f"k1{sfx}_kernel", layer))
        out.append(build_k2(f"k2{sfx}_kernel"))
        out.append(build_k35(f"k3{sfx}_kernel", 3, layer))
        out.append(build_k4(f"k4{sfx}_kernel", layer))
        out.append(build_k35(f"k5{sfx}_kernel", 5, layer))
    return out
```

```python
from asmlib import Kernel, kernel_text, vreg, sreg

S, D, H, DH, F = 2048, 448, 16, 28, 1792
EPS = 1e-5

KA_X, KA_WQKV, KA_WO, KA_BX, KA_WG, KA_WU, KA_WD, KA_OUT, KA_DBG, KA_WS = 0, 8, 16, 24, 32, 40, 48, 56, 64, 72

WS_WQKV_F = 0x0000000
SZ_WQKV_F = 48 * 28 * 1024
WS_WO_F = 0x0160000
SZ_WO_F = 14 * 28 * 1024
WS_WG_F = 0x0200000
SZ_WG_F = 56 * 28 * 1024
WS_WU_F = 0x0400000
WS_WD_F = 0x0600000
SZ_WD_F = 14 * 112 * 1024
WS_CS_QKV = 0x07C0000
WS_CS_G = 0x07C2000
WS_CS_U = 0x07C4000
WS_Q = 0x0800000
SZ_QK = 16 * 2048 * 32 * 2
WS_K = 0x0A00000
WS_VT = 0x0C00000
SZ_VT = 16 * 128 * 1024
WS_O_F = 0x0E00000
SZ_O_F = 64 * 28 * 1024
WS_X1 = 0x1000000
WS_X2 = 0x1200000
WS_X3 = 0x1400000
SZ_X = S * D * 2
WS_H_F = 0x1600000
SZ_H_F = 64 * 112 * 1024
WS_ST0 = 0x1E00000
WS_ST1 = 0x1E40000
WS_ST2 = 0x1E80000
WS_ST3 = 0x1EC0000
SZ_ST = S * 14 * 2 * 4


def magic(d, maxn):
    for s in range(32, 48):
        m = (1 << s) // d + 1
        if m >= (1 << 32):
            continue
        ok = all(((n * m) >> s) == n // d for n in range(0, maxn + 1))
        if ok:
            return m, s
    raise ValueError


def s_div(k, dst, src, d, maxn, tmp):
    m, s = magic(d, maxn)
    k.i(f"s_mov_b32 s{tmp}, {m}")
    k.i(f"s_mul_hi_u32 s{dst}, s{src}, s{tmp}")
    if s > 32:
        k.i(f"s_lshr_b32 s{dst}, s{dst}, {s - 32}")


def load_ptr(k, sdst, kaoff):
    k.i(f"s_load_dwordx2 s[{sdst}:{sdst + 1}], s[0:1], {kaoff}")


def make_srd(k, sdst, sptr, off, size):
    if off:
        k.i(f"s_add_u32 s{sdst}, s{sptr}, {off}")
        k.i(f"s_addc_u32 s{sdst + 1}, s{sptr + 1}, 0")
    else:
        k.i(f"s_mov_b32 s{sdst}, s{sptr}")
        k.i(f"s_mov_b32 s{sdst + 1}, s{sptr + 1}")
    k.i(f"s_mov_b32 s{sdst + 2}, {size}")
    k.i(f"s_mov_b32 s{sdst + 3}, 0x00020000")


def exit_if_ge(k, sreg_, limit):
    k.i(f"s_cmp_ge_u32 s{sreg_}, {limit}")
    lab = k.newlabel("go")
    k.i(f"s_cbranch_scc0 {lab}")
    k.endpgm()
    k.label(lab)


def wave_id(k, sdst, vtmp):
    k.i(f"v_lshrrev_b32 v{vtmp}, 6, v0")
    k.i(f"v_readfirstlane_b32 s{sdst}, v{vtmp}")


import os as _os


def stamps_on(k):
    return _os.environ.get("STAMPS") == k.name


def stamp(k, idx):
    if not stamps_on(k):
        return
    k.waitcnt(lg=0)
    k.raw(f"    s_memtime s[{64 + 2 * idx}:{65 + 2 * idx}]")
    k.raw("    s_waitcnt lgkmcnt(0)")


def stamp_real(k, idx):
    if not stamps_on(k):
        return
    k.raw(f"    s_memrealtime s[{64 + 2 * idx}:{65 + 2 * idx}]")
    k.raw("    s_waitcnt lgkmcnt(0)")


def stamps_flush(k, n):
    if not stamps_on(k):
        return
    k.raw("    s_load_dwordx2 s[84:85], s[0:1], 64")
    k.raw("    s_waitcnt lgkmcnt(0)")
    k.raw("    s_mov_b32 s86, 32768")
    k.raw("    s_mov_b32 s87, 0x00020000")
    k.raw("    s_lshl_b32 s88, s2, 6")
    k.raw("    v_cmp_eq_u32 vcc, 0, v0")
    k.raw("    s_and_saveexec_b64 s[90:91], vcc")
    k.raw("    v_mov_b32 v1, 0")
    for i in range(n):
        k.raw(f"    v_mov_b32 v2, s{64 + 2 * i}")
        k.raw(f"    buffer_store_dword v2, v1, s[84:87], s88 offen offset:{4 * i}")
    k.raw("    s_waitcnt vmcnt(0)")
```

```python
from common import *
import os

import math, struct
ATT_C = (28 ** -0.5) * math.log2(math.e)


def np_f32_hex(x):
    return hex(struct.unpack("<I", struct.pack("<f", x))[0])


LDS_A_STRIDE = 912
LDS_A_BYTES = 128 * LDS_A_STRIDE
LDS_RSTD = 0
LDS_MR = 512
LDS_A0 = 1024
LDS_K14_TOTAL = LDS_A_BYTES + 1024

assert all(((ci * 9363) >> 19) == ci // 56 for ci in range(7168))


def stage_x_and_stats(k, s_x_srd, s_st_srd, s_row0, vt0):
    k.i("v_lshlrev_b32 v3, 4, v0")
    k.i(f"s_mul_i32 s40, s{s_row0}, 896")
    for ii in range(28):
        k.i(f"s_add_u32 s41, s40, {ii * 4096}")
        k.i(f"buffer_load_dwordx4 v[{vt0 + 4 * ii}:{vt0 + 4 * ii + 3}], v3, s[{s_x_srd}:{s_x_srd + 3}], s41 offen")

    def dsw(ii):
        k.i(f"v_add_u32 v4, {ii * 256}, v0")
        k.i("v_mul_u32_u24 v5, 9363, v4")
        k.i("v_lshrrev_b32 v5, 19, v5")
        k.i("v_add_lshl_u32 v4, v4, v5, 4")
        k.i(f"ds_write_b128 v4, v[{vt0 + 4 * ii}:{vt0 + 4 * ii + 3}] offset:{LDS_A0}")

    for ii in range(7):
        dsw(ii)
    k.waitcnt(lg=0)
    k.i(f"v_add_u32 v7, s{s_row0}, v0")
    k.i("v_and_b32 v7, 2047, v7")
    k.i("v_mul_u32_u24 v7, 112, v7")
    for i in range(7):
        k.i(f"buffer_load_dwordx4 v[{vt0 + 4 * i}:{vt0 + 4 * i + 3}], v7, s[{s_st_srd}:{s_st_srd + 3}], 0 offen offset:{16 * i}")
    for ii in range(7, 28):
        dsw(ii)
    k.i("v_cmp_gt_u32 vcc, 128, v0")
    k.i("s_and_saveexec_b64 s[42:43], vcc")
    lab = k.newlabel("st")
    k.i(f"s_cbranch_execz {lab}")
    k.i("v_mov_b32 v5, 0")
    k.i("v_mov_b32 v6, 0")
    for i in range(14):
        k.i(f"v_add_f32 v5, v5, v{vt0 + 2 * i}")
        k.i(f"v_add_f32 v6, v6, v{vt0 + 2 * i + 1}")
    k.i(f"v_mul_f32 v5, {1.0 / 448!r}, v5")
    k.i(f"v_mul_f32 v6, {1.0 / 448!r}, v6")
    k.i("v_fma_f32 v6, -v5, v5, v6")
    k.i("v_max_f32 v6, 0, v6")
    k.i(f"v_add_f32 v6, {EPS!r}, v6")
    k.i("v_rsq_f32 v6, v6")
    k.i("v_mul_f32 v5, v5, v6")
    k.i("v_lshlrev_b32 v4, 2, v0")
    k.i(f"ds_write_b32 v4, v6 offset:{LDS_RSTD}")
    k.i(f"ds_write_b32 v4, v5 offset:{LDS_MR}")
    k.label(lab)
    k.raw("    s_waitcnt vmcnt(0)")
    k.vmq = []
    k.i("s_mov_b64 exec, s[42:43]")
    k.barrier()


def build_k1(name, layer):
    k = Kernel(name)
    exit_if_ge(k, 2, 192)
    load_ptr(k, 4, KA_WS)
    if layer == 1:
        load_ptr(k, 6, KA_X)
    k.waitcnt(lg=0)
    if layer == 1:
        make_srd(k, 12, 6, 0, SZ_X)
    else:
        make_srd(k, 12, 4, WS_X2, SZ_X)
    make_srd(k, 16, 4, WS_WQKV_F, SZ_WQKV_F)
    make_srd(k, 20, 4, WS_ST0 if layer == 1 else WS_ST2, SZ_ST)
    make_srd(k, 24, 4, WS_CS_QKV, 1536 * 4)
    wave_id(k, 32, 1)
    k.i("s_lshr_b32 s30, s2, 4")
    k.i("s_and_b32 s31, s2, 15")
    k.i("s_lshl_b32 s34, s31, 7")
    k.i("s_lshl_b32 s33, s30, 2")
    k.i("s_add_u32 s33, s33, s32")
    k.i("s_mul_i32 s35, s33, 28672")
    k.i("v_and_b32 v1, 63, v0")
    k.i("v_lshlrev_b32 v2, 4, v1")
    VB = 16
    for ks in range(28):
        if ks % 4 == 0:
            k.i(f"s_add_u32 s36, s35, {ks * 1024}")
        k.i(f"buffer_load_dwordx4 v[{VB + 4 * ks}:{VB + 4 * ks + 3}], v2, s[16:19], s36 offen offset:{(ks % 4) * 1024}")
    stage_x_and_stats(k, 12, 20, 34, 128)
    ACC = 128
    AF = [192, 208]
    k.i("v_and_b32 v3, 31, v1")
    k.i(f"v_mul_u32_u24 v3, {LDS_A_STRIDE}, v3")
    k.i("v_lshrrev_b32 v4, 5, v1")
    k.i("v_lshl_add_u32 v8, v4, 4, v3")
    k.i(f"v_add_u32 v9, {2 * 32 * LDS_A_STRIDE}, v8")

    def aload(ks, buf):
        for mt in range(4):
            base = 8 if mt < 2 else 9
            off = LDS_A0 + (mt % 2) * 32 * LDS_A_STRIDE + ks * 32
            k.i(f"ds_read_b128 v[{AF[buf] + 4 * mt}:{AF[buf] + 4 * mt + 3}], v{base} offset:{off}")

    def mainloop(vpath):
        aload(0, 0)
        for ks in range(28):
            if ks + 1 < 28:
                aload(ks + 1, (ks + 1) % 2)
            for mt in range(4):
                a = f"v[{AF[ks % 2] + 4 * mt}:{AF[ks % 2] + 4 * mt + 3}]"
                b = f"v[{VB + 4 * ks}:{VB + 4 * ks + 3}]"
                acc = f"v[{ACC + 16 * mt}:{ACC + 16 * mt + 15}]"
                c = "0" if ks == 0 else acc
                if vpath:
                    k.i(f"v_mfma_f32_32x32x16_bf16 {acc}, {a}, {b}, {c}")
                else:
                    k.i(f"v_mfma_f32_32x32x16_bf16 {acc}, {b}, {a}, {c}")

    l_v = k.newlabel("vpath")
    k.i("s_cmp_ge_u32 s30, 8")
    k.i(f"s_cbranch_scc1 {l_v}")
    mainloop(False)
    k.i("s_cmp_lt_u32 s30, 4")
    k.i(f"s_mov_b32 s36, {WS_K}")
    k.i(f"s_cselect_b32 s36, {WS_Q}, s36")
    k.i("s_add_u32 s28, s4, s36")
    k.i("s_addc_u32 s29, s5, 0")
    k.i(f"s_mov_b32 s30, {SZ_QK}")
    k.i("s_mov_b32 s31, 0x00020000")
    k.i("s_and_b32 s36, s33, 15")
    k.i("s_lshl_b32 s36, s36, 17")
    k.i("v_lshrrev_b32 v4, 5, v1")
    k.i("v_lshlrev_b32 v4, 4, v4")
    k.i("s_lshl_b32 s37, s33, 7")
    CS = 16
    for qd in range(4):
        k.i(f"buffer_load_dwordx4 v[{CS + 4 * qd}:{CS + 4 * qd + 3}], v4, s[24:27], s37 offen offset:{32 * qd}")
    k.i("v_and_b32 v5, 31, v1")
    k.i("v_lshlrev_b32 v5, 2, v5")
    RS, MR = 32, 36
    for mt in range(4):
        k.i(f"ds_read_b32 v{RS + mt}, v5 offset:{LDS_RSTD + 128 * mt}")
        k.i(f"ds_read_b32 v{MR + mt}, v5 offset:{LDS_MR + 128 * mt}")
    k.i("s_cmp_lt_u32 s33, 16")
    k.i(f"s_cselect_b32 s38, {np_f32_hex(ATT_C)}, 1.0")
    for mt in range(4):
        k.i(f"v_mul_f32 v{RS + mt}, s38, v{RS + mt}")
        k.i(f"v_mul_f32 v{MR + mt}, s38, v{MR + mt}")
    k.i("v_and_b32 v5, 31, v1")
    k.i("v_lshlrev_b32 v5, 4, v5")
    k.i("v_lshrrev_b32 v6, 5, v1")
    k.i("v_lshl_add_u32 v5, v6, 3, v5")
    k.i("s_lshl_b32 s37, s34, 6")
    k.i("s_add_u32 s36, s36, s37")
    for mt in range(4):
        for qd in range(4):
            for i in range(4):
                a = ACC + 16 * mt + 4 * qd + i
                k.i(f"v_mul_f32 v{a}, v{a}, v{RS + mt}")
                k.i(f"v_fma_f32 v{a}, -v{MR + mt}, v{CS + 4 * qd + i}, v{a}")
            a = ACC + 16 * mt + 4 * qd
            k.i(f"v_cvt_pk_bf16_f32 v40, v{a}, v{a + 1}")
            k.i(f"v_cvt_pk_bf16_f32 v41, v{a + 2}, v{a + 3}")
            k.i(f"buffer_store_dwordx2 v[40:41], v5, s[28:31], s36 offen offset:{(qd >> 1) * 1024 + (qd & 1) * 512}")
        k.i("s_add_u32 s36, s36, 2048")
    k.endpgm()
    k.label(l_v)
    mainloop(True)
    make_srd(k, 28, 4, WS_VT, SZ_VT)
    k.i("s_sub_u32 s36, s33, 32")
    k.i("s_lshl_b32 s36, s36, 17")
    k.i("s_lshl_b32 s37, s34, 6")
    k.i("s_add_u32 s36, s36, s37")
    k.i("v_and_b32 v4, 31, v1")
    k.i("v_lshlrev_b32 v4, 2, v4")
    k.i("s_lshl_b32 s37, s33, 7")
    k.i("buffer_load_dword v16, v4, s[24:27], s37 offen")
    k.i("v_and_b32 v4, 31, v1")
    k.i("v_cmp_eq_u32 vcc, 28, v4")
    k.i("v_mov_b32 v17, 0x3f803f80")
    k.i("v_lshrrev_b32 v5, 5, v1")
    k.i("v_lshlrev_b32 v5, 4, v5")
    for mt in range(4):
        for b in range(2):
            for jh in range(2):
                qd = 2 * b + jh
                off = (mt * 32 + qd * 8) * 4
                k.i(f"ds_read_b128 v[{20 + 8 * jh}:{23 + 8 * jh}], v5 offset:{LDS_RSTD + off}")
                k.i(f"ds_read_b128 v[{24 + 8 * jh}:{27 + 8 * jh}], v5 offset:{LDS_MR + off}")
                for i in range(4):
                    a = ACC + 16 * mt + 4 * qd + i
                    k.i(f"v_mul_f32 v{a}, v{a}, v{20 + 8 * jh + i}")
                    k.i(f"v_fma_f32 v{a}, -v{24 + 8 * jh + i}, v16, v{a}")
                a = ACC + 16 * mt + 4 * qd
                k.i(f"v_cvt_pk_bf16_f32 v{40 + 2 * jh}, v{a}, v{a + 1}")
                k.i(f"v_cvt_pk_bf16_f32 v{41 + 2 * jh}, v{a + 2}, v{a + 3}")
            for r in range(4):
                k.i(f"v_cndmask_b32 v{40 + r}, v{40 + r}, v17, vcc")
            kb = mt * 2 + b
            k.i(f"buffer_store_dwordx4 v[40:43], v2, s[28:31], s36 offen offset:{(kb % 4) * 1024}")
            if kb == 3:
                k.i("s_add_u32 s36, s36, 4096")
    k.endpgm()
    return kernel_text(k, 256, 64), (name, 192, 256, LDS_K14_TOTAL)


def build_layers():
    out = []
    out.append(build_k1("k1a_kernel", 1))
    return out


import math
ATT_C = (28 ** -0.5) * math.log2(math.e)
LDS_ATT = 1024 + 32768


def build_k2(name):
    k = Kernel(name)
    exit_if_ge(k, 2, 512)
    stamp(k, 0)
    stamp_real(k, 6)
    load_ptr(k, 4, KA_WS)
    k.waitcnt(lg=0)
    make_srd(k, 12, 4, WS_Q, SZ_QK)
    make_srd(k, 16, 4, WS_K, SZ_QK)
    make_srd(k, 20, 4, WS_VT, SZ_VT)
    make_srd(k, 24, 4, WS_O_F, SZ_O_F)
    wave_id(k, 32, 1)
    k.i("s_and_b32 s30, s2, 7")
    k.i("s_lshl_b32 s30, s30, 1")
    k.i("s_bfe_u32 s31, s2, 0x10003")
    k.i("s_add_u32 s30, s30, s31")
    k.i("s_lshr_b32 s31, s2, 4")
    k.i("s_lshl_b32 s33, s30, 17")
    k.i("v_and_b32 v1, 63, v0")
    k.i("v_lshlrev_b32 v2, 4, v1")
    k.i("v_lshlrev_b32 v3, 4, v1")
    QF, OA, PP = 16, 32, 96
    SAB = [64, 160]
    KF = [112, 120, 128, 136]
    VF = [224, 232, 240, 248]
    MC = 144
    k.i("s_lshl_b32 s34, s31, 12")
    k.i("s_add_u32 s34, s34, s33")
    for qt in range(2):
        for kk in range(2):
            r = QF + qt * 8 + kk * 4
            k.i(f"buffer_load_dwordx4 v[{r}:{r + 3}], v2, s[12:15], s34 offen offset:{qt * 2048 + kk * 1024}")
    k.i("s_lshl_b32 s35, s32, 15")
    k.i("s_add_u32 s35, s35, s33")
    k.i("s_lshl_b32 s36, s32, 15")
    k.i("s_add_u32 s36, s36, s33")
    k.i(f"s_mov_b32 s40, {ATT_C!r}")

    CI = 192

    def kload(buf):
        for kk in range(2):
            r = KF[buf] + kk * 4
            k.i(f"buffer_load_dwordx4 v[{r}:{r + 3}], v2, s[16:19], s35 offen offset:{kk * 1024}")
        k.i("s_add_u32 s35, s35, 2048")

    def vload(buf):
        for b in range(2):
            r = VF[buf] + b * 4
            k.i(f"buffer_load_dwordx4 v[{r}:{r + 3}], v3, s[20:23], s36 offen offset:{b * 1024}")
        k.i("s_add_u32 s36, s36, 2048")

    def qk(kbuf, sbuf, cinit):
        for kk in range(2):
            for qt in range(2):
                s = SAB[sbuf] + 16 * qt
                c = (f"v[{CI + 16 * qt}:{CI + 16 * qt + 15}]" if cinit else "0") if kk == 0 else f"v[{s}:{s + 15}]"
                k.i(f"v_mfma_f32_32x32x16_bf16 v[{s}:{s + 15}], v[{KF[kbuf] + 4 * kk}:{KF[kbuf] + 4 * kk + 3}], "
                    f"v[{QF + 8 * qt + 4 * kk}:{QF + 8 * qt + 4 * kk + 3}], {c}")

    k.i("s_mov_b32 s38, s35")
    k.i(f"v_mov_b32 v{MC}, -1e30")
    k.i(f"v_mov_b32 v{MC + 1}, -1e30")
    KB = [112 + 8 * i for i in range(4)] + [224 + 8 * i for i in range(4)] + [192 + 8 * i for i in range(4)] + \
         [32 + 8 * i for i in range(4)]
    for j in range(16):
        for kk in range(2):
            r = KB[j] + 4 * kk
            k.i(f"buffer_load_dwordx4 v[{r}:{r + 3}], v2, s[16:19], s35 offen offset:{kk * 1024}")
        k.i("s_add_u32 s35, s35, 2048")

    def qk1(j):
        for kk in range(2):
            for qt in range(2):
                s = SAB[j % 2] + 16 * qt
                c = "0" if kk == 0 else f"v[{s}:{s + 15}]"
                k.i(f"v_mfma_f32_32x32x16_bf16 v[{s}:{s + 15}], v[{KB[j] + 4 * kk}:{KB[j] + 4 * kk + 3}], "
                    f"v[{QF + 8 * qt + 4 * kk}:{QF + 8 * qt + 4 * kk + 3}], {c}")

    def qk1l(j):
        out = []
        for kk in range(2):
            for qt in range(2):
                s = SAB[j % 2] + 16 * qt
                c = "0" if kk == 0 else f"v[{s}:{s + 15}]"
                out.append(f"v_mfma_f32_32x32x16_bf16 v[{s}:{s + 15}], v[{KB[j] + 4 * kk}:{KB[j] + 4 * kk + 3}], "
                           f"v[{QF + 8 * qt + 4 * kk}:{QF + 8 * qt + 4 * kk + 3}], {c}")
        return out

    qk1(0)
    stamp(k, 1)
    for j in range(16):
        mf = qk1l(j + 1) if j + 1 < 16 else []
        n = 0
        for qt in range(2):
            s = SAB[j % 2] + 16 * qt
            for jj in range(0, 16, 2):
                if n % 4 == 0 and mf:
                    k.i(mf.pop(0))
                n += 1
                k.i(f"v_max3_f32 v{MC + qt}, v{MC + qt}, v{s + jj}, v{s + jj + 1}")
    for r in range(32):
        k.i(f"v_mov_b32 v{OA + r}, 0")
    k.i("s_mov_b32 s35, s38")
    for j in range(3):
        kload(j)
        vload(j)
    kload(3)
    for qt in range(2):
        k.i(f"v_mov_b32 v146, v{MC + qt}")
        k.i(f"v_permlane32_swap_b32 v{MC + qt}, v146")
        k.i(f"v_max_f32 v{MC + qt}, v{MC + qt}, v146")
        for r in range(16):
            k.i(f"v_sub_f32 v{CI + 16 * qt + r}, 0, v{MC + qt}")
    stamp(k, 2)
    qk(0, 0, True)
    k.i("s_mov_b32 s37, 0")
    loop = k.newlabel("loop")
    k.flush_hazards()
    k.label(loop)
    sig0 = k.sig()
    for j in range(4):
        vload((j + 3) % 4)
        mf = []
        kb, sb = (j + 1) % 4, (j + 1) % 2
        for kk in range(2):
            for qt in range(2):
                s = SAB[sb] + 16 * qt
                c = f"v[{CI + 16 * qt}:{CI + 16 * qt + 15}]" if kk == 0 else f"v[{s}:{s + 15}]"
                mf.append(f"v_mfma_f32_32x32x16_bf16 v[{s}:{s + 15}], v[{KF[kb] + 4 * kk}:{KF[kb] + 4 * kk + 3}], "
                          f"v[{QF + 8 * qt + 4 * kk}:{QF + 8 * qt + 4 * kk + 3}], {c}")
        for qt in range(2):
            s = SAB[j % 2] + 16 * qt
            for r in range(16):
                if r % 4 == 0 and mf:
                    k.i(mf.pop(0))
                k.i(f"v_exp_f32 v{s + r}, v{s + r}")
            if qt == 0:
                kload(j)
            for r in range(8):
                k.i(f"v_cvt_pk_bf16_f32 v{PP + 8 * qt + r}, v{s + 2 * r}, v{s + 2 * r + 1}")
            o = OA + 16 * qt
            for b in range(2):
                mf.append(f"v_mfma_f32_32x32x16_bf16 v[{o}:{o + 15}], v[{VF[j] + 4 * b}:{VF[j] + 4 * b + 3}], "
                          f"v[{PP + 8 * qt + 4 * b}:{PP + 8 * qt + 4 * b + 3}], v[{o}:{o + 15}]")
        for m in mf:
            k.i(m)
    k.i("s_add_u32 s37, s37, 1")
    k.i(f"s_cmp_lt_u32 s37, {os.environ.get('K2_IT2', 4)}")
    k.flush_hazards()
    assert k.sig() == sig0, (k.sig(), sig0)
    k.i(f"s_cbranch_scc1 {loop}")
    k.wait_all()
    stamp(k, 3)
    k.i("v_and_b32 v4, 31, v1")
    k.i("v_lshlrev_b32 v4, 2, v4")
    k.i("s_lshl_b32 s38, s32, 8")
    k.i("v_add_u32 v5, s38, v4")
    k.i(f"ds_write_b32 v5, v{MC}")
    k.i(f"ds_write_b32 v5, v{MC + 1} offset:128")
    k.barrier()
    for w in range(4):
        k.i(f"ds_read_b32 v{146 + w}, v4 offset:{w * 256}")
        k.i(f"ds_read_b32 v{150 + w}, v4 offset:{w * 256 + 128}")
    k.i("v_max3_f32 v146, v146, v147, v148")
    k.i("v_max_f32 v146, v146, v149")
    k.i("v_max3_f32 v150, v150, v151, v152")
    k.i("v_max_f32 v150, v150, v153")
    k.i(f"v_sub_f32 v146, v{MC}, v146")
    k.i(f"v_sub_f32 v150, v{MC + 1}, v150")
    k.i("v_exp_f32 v146, v146")
    k.i("v_exp_f32 v150, v150")
    for r in range(16):
        k.i(f"v_mul_f32 v{OA + r}, v{OA + r}, v146")
        k.i(f"v_mul_f32 v{OA + 16 + r}, v{OA + 16 + r}, v150")
    k.i("s_lshl_b32 s38, s32, 13")
    k.i("v_add_u32 v5, s38, v3")
    for qt in range(2):
        for qd in range(4):
            r = OA + 16 * qt + 4 * qd
            k.i(f"ds_write_b128 v5, v[{r}:{r + 3}] offset:{1024 + (qt * 4 + qd) * 1024}")
    k.barrier()
    k.i("s_and_b32 s38, s32, 1")
    k.i("s_lshr_b32 s39, s32, 1")
    k.i("s_lshl_b32 s41, s38, 12")
    k.i("s_lshl_b32 s42, s39, 11")
    k.i("s_add_u32 s41, s41, s42")
    k.i("v_add_u32 v5, s41, v3")
    for w in range(4):
        for j in range(2):
            r = 64 + 8 * w + 4 * j
            k.i(f"ds_read_b128 v[{r}:{r + 3}], v5 offset:{1024 + w * 8192 + j * 1024}")
    k.i("v_and_b32 v6, 31, v1")
    k.i("v_lshlrev_b32 v6, 4, v6")
    k.i("s_lshl_b32 s41, s38, 12")
    k.i("v_add_u32 v6, s41, v6")
    for w in range(4):
        k.i(f"ds_read_b32 v{100 + w}, v6 offset:{1024 + w * 8192 + 3 * 1024 + 512}")
    for j in range(8):
        k.i(f"v_add_f32 v{64 + j}, v{64 + j}, v{72 + j}")
        k.i(f"v_add_f32 v{80 + j}, v{80 + j}, v{88 + j}")
        k.i(f"v_add_f32 v{64 + j}, v{64 + j}, v{80 + j}")
    k.i("v_add_f32 v100, v100, v101")
    k.i("v_add_f32 v102, v102, v103")
    k.i("v_add_f32 v100, v100, v102")
    k.i("v_rcp_f32 v100, v100")
    for j in range(8):
        k.i(f"v_mul_f32 v{64 + j}, v{64 + j}, v100")
    k.i("s_lshl_b32 s41, s31, 1")
    k.i("s_add_u32 s41, s41, s38")
    k.i("s_mul_i32 s41, s41, 28672")
    k.i("s_mul_i32 s42, s30, 28")
    k.i("s_lshl_b32 s43, s39, 4")
    k.i("s_add_u32 s42, s42, s43")
    k.i("v_lshrrev_b32 v7, 5, v1")
    k.i("v_lshlrev_b32 v7, 2, v7")
    k.i("v_and_b32 v8, 31, v1")
    for j in range(2):
        k.i(f"v_add_u32 v9, {8 * j}, v7")
        k.i("v_add_u32 v9, s42, v9")
        k.i("v_lshrrev_b32 v10, 4, v9")
        k.i("v_lshlrev_b32 v10, 10, v10")
        k.i("v_bfe_u32 v11, v9, 3, 1")
        k.i("v_lshl_add_u32 v11, v11, 5, v8")
        k.i("v_lshl_add_u32 v10, v11, 4, v10")
        k.i("v_and_b32 v11, 7, v9")
        k.i("v_lshl_add_u32 v10, v11, 1, v10")
        k.i(f"v_cvt_pk_bf16_f32 v12, v{64 + 4 * j}, v{65 + 4 * j}")
        k.i(f"v_cvt_pk_bf16_f32 v13, v{66 + 4 * j}, v{67 + 4 * j}")
        k.i("s_mul_i32 s43, s30, 28")
        k.i("v_subrev_u32 v14, s43, v9")
        k.i("v_cmp_gt_u32 vcc, 28, v14")
        k.i("s_and_saveexec_b64 s[44:45], vcc")
        k.i("buffer_store_dwordx2 v[12:13], v10, s[24:27], s41 offen")
        k.i("s_mov_b64 exec, s[44:45]")
    if stamps_on(k):
        k.wait_all()
    stamp(k, 4)
    stamp_real(k, 5)
    stamps_flush(k, 7)
    k.endpgm()
    return kernel_text(k, 256, 96 if stamps_on(k) else 64), (name, 512, 256, LDS_ATT)


def build_k35(name, kind, layer):
    KS = 28 if kind == 3 else 112
    per = KS // 4
    k = Kernel(name)
    exit_if_ge(k, 2, 224)
    load_ptr(k, 4, KA_WS)
    if kind == 3 and layer == 1:
        load_ptr(k, 6, KA_X)
    if kind == 5 and layer == 2:
        load_ptr(k, 8, KA_OUT)
    k.waitcnt(lg=0)
    if kind == 3:
        make_srd(k, 12, 4, WS_O_F, SZ_O_F)
        make_srd(k, 16, 4, WS_WO_F, SZ_WO_F)
        if layer == 1:
            make_srd(k, 20, 6, 0, SZ_X)
        else:
            make_srd(k, 20, 4, WS_X2, SZ_X)
        make_srd(k, 24, 4, WS_X1 if layer == 1 else WS_X3, SZ_X)
        make_srd(k, 28, 4, WS_ST1 if layer == 1 else WS_ST3, SZ_ST)
        stats = True
    else:
        make_srd(k, 12, 4, WS_H_F, SZ_H_F)
        make_srd(k, 16, 4, WS_WD_F, SZ_WD_F)
        make_srd(k, 20, 4, WS_X1 if layer == 1 else WS_X3, SZ_X)
        if layer == 1:
            make_srd(k, 24, 4, WS_X2, SZ_X)
            make_srd(k, 28, 4, WS_ST2, SZ_ST)
        else:
            make_srd(k, 24, 8, 0, SZ_X)
        stats = layer == 1
    wave_id(k, 32, 1)
    k.i("s_and_b32 s33, s2, 7")
    k.i("s_lshl_b32 s33, s33, 2")
    k.i("s_bfe_u32 s34, s2, 0x20003")
    k.i("s_add_u32 s33, s33, s34")
    k.i("s_lshr_b32 s34, s2, 5")
    k.i("v_and_b32 v1, 63, v0")
    k.i("v_lshlrev_b32 v2, 4, v1")
    k.i("s_lshr_b32 s35, s32, 1")
    k.i("s_and_b32 s36, s32, 1")
    k.i("s_lshl_b32 s37, s33, 6")
    k.i("s_lshl_b32 s38, s35, 5")
    k.i("s_add_u32 s37, s37, s38")
    k.i("v_and_b32 v3, 31, v1")
    k.i("v_add_u32 v3, s37, v3")
    k.i("v_mul_u32_u24 v4, 896, v3")
    k.i("v_lshrrev_b32 v5, 5, v1")
    k.i("v_lshl_add_u32 v4, v5, 3, v4")
    k.i("s_lshl_b32 s38, s34, 7")
    k.i("s_lshl_b32 s39, s36, 6")
    k.i("s_add_u32 s38, s38, s39")
    RES = 8
    for qd in range(4):
        k.i(f"buffer_load_dwordx2 v[{RES + 2 * qd}:{RES + 2 * qd + 1}], v4, s[20:23], s38 offen offset:{qd * 16}")
    k.i(f"s_mul_i32 s40, s32, {per * 1024}")
    k.i(f"s_mul_i32 s41, s33, {2 * KS * 1024}")
    k.i("s_add_u32 s41, s41, s40")
    k.i(f"s_add_u32 s42, s41, {KS * 1024}")
    k.i(f"s_mul_i32 s43, s34, {2 * KS * 1024}")
    k.i("s_add_u32 s43, s43, s40")
    k.i(f"s_add_u32 s44, s43, {KS * 1024}")
    ACC = 16
    BUF = [80, 144]
    chunks = []
    i = 0
    while i < per:
        n = min(4, per - i)
        if per - i == 5:
            n = 3
        chunks.append(n)
        i += n

    def loadc(ci):
        base = BUF[ci % 2]
        for j in range(chunks[ci]):
            for t, sreg_ in enumerate((41, 42, 43, 44)):
                srd = 12 if t < 2 else 16
                r = base + 16 * j + 4 * t
                k.i(f"buffer_load_dwordx4 v[{r}:{r + 3}], v2, s[{srd}:{srd + 3}], s{sreg_} offen offset:{j * 1024}")
        for sreg_ in (41, 42, 43, 44):
            k.i(f"s_add_u32 s{sreg_}, s{sreg_}, {chunks[ci] * 1024}")

    loadc(0)
    first = True
    for ci in range(len(chunks)):
        if ci + 1 < len(chunks):
            loadc(ci + 1)
        base = BUF[ci % 2]
        for j in range(chunks[ci]):
            for mt in range(2):
                for nt in range(2):
                    acc = ACC + 16 * (mt * 2 + nt)
                    a = base + 16 * j + 4 * mt
                    b = base + 16 * j + 8 + 4 * nt
                    c = "0" if first else f"v[{acc}:{acc + 15}]"
                    k.i(f"v_mfma_f32_32x32x16_bf16 v[{acc}:{acc + 15}], v[{b}:{b + 3}], v[{a}:{a + 3}], {c}")
            first = False
    k.i("s_lshl_b32 s40, s32, 14")
    k.i("v_add_u32 v5, s40, v2")
    for t in range(4):
        for qd in range(4):
            r = ACC + 16 * t + 4 * qd
            k.i(f"ds_write_b128 v5, v[{r}:{r + 3}] offset:{t * 4096 + qd * 1024}")
    k.barrier()
    k.i("s_lshl_b32 s40, s32, 12")
    k.i("v_add_u32 v5, s40, v2")
    P = 80
    for src in range(4):
        for qd in range(4):
            r = P + 16 * src + 4 * qd
            k.i(f"ds_read_b128 v[{r}:{r + 3}], v5 offset:{src * 16384 + qd * 1024}")
    for r in range(16):
        k.i(f"v_add_f32 v{P + r}, v{P + r}, v{P + 16 + r}")
        k.i(f"v_add_f32 v{P + 32 + r}, v{P + 32 + r}, v{P + 48 + r}")
        k.i(f"v_add_f32 v{P + r}, v{P + r}, v{P + 32 + r}")
    if stats:
        k.i("v_mov_b32 v6, 0")
        k.i("v_mov_b32 v7, 0")
    k.i("v_mov_b32 v20, 0xffff0000")
    for qd in range(4):
        for h in range(2):
            rr = RES + 2 * qd + h
            k.i(f"v_lshlrev_b32 v16, 16, v{rr}")
            k.i(f"v_and_b32 v17, v20, v{rr}")
            k.i(f"v_add_f32 v{P + 4 * qd + 2 * h}, v{P + 4 * qd + 2 * h}, v16")
            k.i(f"v_add_f32 v{P + 4 * qd + 2 * h + 1}, v{P + 4 * qd + 2 * h + 1}, v17")
            k.i(f"v_cvt_pk_bf16_f32 v{18 + h}, v{P + 4 * qd + 2 * h}, v{P + 4 * qd + 2 * h + 1}")
            if stats:
                k.i(f"v_lshlrev_b32 v16, 16, v{18 + h}")
                k.i(f"v_and_b32 v17, v20, v{18 + h}")
                k.i("v_add_f32 v6, v6, v16")
                k.i("v_fma_f32 v7, v16, v16, v7")
                k.i("v_add_f32 v6, v6, v17")
                k.i("v_fma_f32 v7, v17, v17, v7")
        k.i(f"buffer_store_dwordx2 v[18:19], v4, s[24:27], s38 offen offset:{qd * 16}")
    if stats:
        k.i("v_mov_b32 v16, v6")
        k.i("v_mov_b32 v17, v7")
        k.i("v_permlane32_swap_b32 v6, v16")
        k.i("v_permlane32_swap_b32 v7, v17")
        k.i("v_add_f32 v6, v6, v16")
        k.i("v_add_f32 v7, v7, v17")
        k.i("v_mul_u32_u24 v5, 112, v3")
        k.i("s_lshl_b32 s40, s34, 4")
        k.i("s_lshl_b32 s41, s36, 3")
        k.i("s_add_u32 s40, s40, s41")
        k.i("v_cmp_gt_u32 vcc, 32, v1")
        k.i("s_and_saveexec_b64 s[44:45], vcc")
        k.i("buffer_store_dwordx2 v[6:7], v5, s[28:31], s40 offen")
    k.endpgm()
    return kernel_text(k, 208, 64), (name, 224, 256, 65536)


def build_k4(name, layer):
    k = Kernel(name)
    exit_if_ge(k, 2, 224)
    stamp(k, 0)
    stamp_real(k, 6)
    load_ptr(k, 4, KA_WS)
    k.waitcnt(lg=0)
    make_srd(k, 12, 4, WS_X1 if layer == 1 else WS_X3, SZ_X)
    make_srd(k, 16, 4, WS_WG_F, SZ_WG_F)
    make_srd(k, 20, 4, WS_ST1 if layer == 1 else WS_ST3, SZ_ST)
    make_srd(k, 24, 4, WS_CS_G, 1792 * 4)
    make_srd(k, 56, 4, WS_H_F, SZ_H_F)
    make_srd(k, 48, 4, WS_WU_F, SZ_WG_F)
    make_srd(k, 52, 4, WS_CS_U, 1792 * 4)
    wave_id(k, 32, 1)
    k.i("s_lshr_b32 s30, s2, 4")
    k.i("s_and_b32 s31, s2, 15")
    k.i("s_lshl_b32 s34, s31, 7")
    k.i("s_lshl_b32 s33, s30, 2")
    k.i("s_add_u32 s33, s33, s32")
    k.i("s_mul_i32 s35, s33, 28672")
    k.i("v_and_b32 v1, 63, v0")
    k.i("v_lshlrev_b32 v2, 4, v1")
    BB = [16, 48]
    AF = [80, 96]
    ACC = 112

    def bload(c):
        base = BB[c % 2]
        for j in range(4):
            k.i(f"buffer_load_dwordx4 v[{base + 8 * j}:{base + 8 * j + 3}], v2, s[16:19], s35 offen offset:{j * 1024}")
            k.i(f"buffer_load_dwordx4 v[{base + 8 * j + 4}:{base + 8 * j + 7}], v2, s[48:51], s35 offen offset:{j * 1024}")
        k.i("s_add_u32 s35, s35, 4096")

    bload(0)
    stage_x_and_stats(k, 12, 20, 34, ACC)
    stamp(k, 1)
    k.i("v_and_b32 v3, 31, v1")
    k.i(f"v_mul_u32_u24 v3, {LDS_A_STRIDE}, v3")
    k.i("v_lshrrev_b32 v4, 5, v1")
    k.i("v_lshl_add_u32 v8, v4, 4, v3")
    k.i(f"v_add_u32 v9, {2 * 32 * LDS_A_STRIDE}, v8")

    def aload(ks, buf):
        for mt in range(4):
            base = 8 if mt < 2 else 9
            off = LDS_A0 + (mt % 2) * 32 * LDS_A_STRIDE + ks * 32
            k.i(f"ds_read_b128 v[{AF[buf] + 4 * mt}:{AF[buf] + 4 * mt + 3}], v{base} offset:{off}")

    aload(0, 0)
    for ks in range(28):
        c, j = ks // 4, ks % 4
        if j == 0 and c + 1 < 7:
            bload(c + 1)
        if ks + 1 < 28:
            aload(ks + 1, (ks + 1) % 2)
        for mt in range(4):
            a = f"v[{AF[ks % 2] + 4 * mt}:{AF[ks % 2] + 4 * mt + 3}]"
            for gu in range(2):
                b0 = BB[c % 2] + 8 * j + 4 * gu
                acc = ACC + 64 * gu + 16 * mt
                cc = "0" if ks == 0 else f"v[{acc}:{acc + 15}]"
                k.i(f"v_mfma_f32_32x32x16_bf16 v[{acc}:{acc + 15}], v[{b0}:{b0 + 3}], {a}, {cc}")
    stamp(k, 2)
    k.i("v_lshrrev_b32 v4, 5, v1")
    k.i("v_lshlrev_b32 v4, 4, v4")
    k.i("s_lshl_b32 s37, s33, 7")
    CG, CU = 16, 32
    for qd in range(4):
        k.i(f"buffer_load_dwordx4 v[{CG + 4 * qd}:{CG + 4 * qd + 3}], v4, s[24:27], s37 offen offset:{32 * qd}")
        k.i(f"buffer_load_dwordx4 v[{CU + 4 * qd}:{CU + 4 * qd + 3}], v4, s[52:55], s37 offen offset:{32 * qd}")
    k.i("v_and_b32 v5, 31, v1")
    k.i("v_lshlrev_b32 v5, 2, v5")
    RS, MR = 48, 52
    for mt in range(4):
        k.i(f"ds_read_b32 v{RS + mt}, v5 offset:{LDS_RSTD + 128 * mt}")
        k.i(f"ds_read_b32 v{MR + mt}, v5 offset:{LDS_MR + 128 * mt}")
    k.i("v_and_b32 v5, 31, v1")
    k.i("v_lshlrev_b32 v5, 4, v5")
    k.i("v_lshrrev_b32 v6, 5, v1")
    k.i("v_lshl_add_u32 v5, v6, 3, v5")
    k.i("s_lshl_b32 s36, s31, 2")
    k.i(f"s_mul_i32 s36, s36, {112 * 1024}")
    k.i("s_lshl_b32 s37, s33, 11")
    k.i("s_add_u32 s36, s36, s37")
    NL2E = -math.log2(math.e)
    for mt in range(4):
        for qd in range(4):
            for i in range(4):
                g = ACC + 16 * mt + 4 * qd + i
                u = g + 64
                k.i(f"v_mul_f32 v{g}, v{g}, v{RS + mt}")
                k.i(f"v_fma_f32 v{g}, -v{MR + mt}, v{CG + 4 * qd + i}, v{g}")
                k.i(f"v_mul_f32 v{g}, {NL2E!r}, v{g}")
                k.i(f"v_exp_f32 v{g}, v{g}")
                k.i(f"v_mul_f32 v{u}, v{u}, v{RS + mt}")
                k.i(f"v_fma_f32 v{u}, -v{MR + mt}, v{CU + 4 * qd + i}, v{u}")
                k.i(f"v_add_f32 v{g}, 1.0, v{g}")
                k.i(f"v_rcp_f32 v{g}, v{g}")
                k.i(f"v_mul_f32 v{u}, v{u}, v{g}")
            u = ACC + 64 + 16 * mt + 4 * qd
            k.i(f"v_cvt_pk_bf16_f32 v56, v{u}, v{u + 1}")
            k.i(f"v_cvt_pk_bf16_f32 v57, v{u + 2}, v{u + 3}")
            k.i(f"buffer_store_dwordx2 v[56:57], v5, s[56:59], s36 offen offset:{(qd >> 1) * 1024 + (qd & 1) * 512}")
        k.i(f"s_add_u32 s36, s36, {112 * 1024}")
    stamp(k, 3)
    if stamps_on(k):
        k.wait_all()
    stamp(k, 4)
    stamp_real(k, 5)
    stamps_flush(k, 7)
    k.endpgm()
    return kernel_text(k, 240, 96 if stamps_on(k) else 64), (name, 224, 256, LDS_K14_TOTAL)


def build_layers():
    out = []
    for layer, sfx in ((1, "a"), (2, "b")):
        out.append(build_k1(f"k1{sfx}_kernel", layer))
        out.append(build_k2(f"k2{sfx}_kernel"))
        out.append(build_k35(f"k3{sfx}_kernel", 3, layer))
        out.append(build_k4(f"k4{sfx}_kernel", layer))
        out.append(build_k35(f"k5{sfx}_kernel", 5, layer))
    return out
```
